```python
import torch

def _softmax(x, axis=-1):
    return torch.softmax(x, dim=axis)

def _gelu(x):
    return torch.nn.functional.gelu(x, approximate='tanh')

def _silu(x):
    return torch.nn.functional.silu(x)

def _sigmoid(x):
    return torch.sigmoid(x)

def _layernorm(x, axis=-1, eps=1e-05):
    m = x.mean(dim=axis, keepdim=True)
    v = x.var(dim=axis, keepdim=True, unbiased=False)
    return (x - m) / torch.sqrt(v + eps)

def _scatter_add(tgt, idx, src, axis=0):
    return tgt.clone().index_add_(axis, idx, src)

def _segment_sum(src, seg, n):
    out = torch.zeros((n,) + src.shape[1:], dtype=src.dtype)
    return out.index_add_(0, seg, src)

def _pad(x, pw):
    flat = tuple((v for pair in reversed(pw) for v in pair))
    return torch.nn.functional.pad(x, flat)
kernel_name = 'gated_mix__memory_aug_recurrent_mem_tr__swiglu_ffn__prompt'

def setup_inputs():

    _w = lambda a: (lambda t: t.to(torch.bfloat16) if t.is_floating_point() else t)(torch.as_tensor(a))

    def _A_setup():
        B, S, Dm = (1, 2048, 576)
        H, Dh = (32, 128)
        M, seg = (8, 32)
        seg = min(seg, S)
        S = S // seg * seg
        return {'x': _w((lambda *s: torch.randn(*s, dtype=torch.bfloat16) * 0.05)(B, S, Dm)), 'mem0': _w((lambda *s: torch.randn(*s, dtype=torch.bfloat16) * 0.4)(B, M, Dm)), 'Wq': _w((lambda *s: torch.randn(*s, dtype=torch.bfloat16) * 6.4)(Dm, H, Dh) * Dm ** (-0.5)), 'Wk': _w((lambda *s: torch.randn(*s, dtype=torch.bfloat16) * 6.4)(Dm, H, Dh) * Dm ** (-0.5)), 'Wv': _w((lambda *s: torch.randn(*s, dtype=torch.bfloat16) * 0.4)(Dm, H, Dh) * Dm ** (-0.5)), 'Wo': _w((lambda *s: torch.randn(*s, dtype=torch.bfloat16) * 0.4)(H, Dh, Dm) * (H * Dh) ** (-0.5)), 'seg_len': seg}
    _A_in = _A_setup()

    def _B_setup():
        B, S, D, F = (1, 2048, 576, 4608)
        return {'x': _w((lambda *s: torch.randn(*s, dtype=torch.bfloat16) * 0.05)(B, S, D)), 'w_gate': _w((lambda *s: torch.randn(*s, dtype=torch.bfloat16) * 0.05)(D, F)), 'w_up': _w((lambda *s: torch.randn(*s, dtype=torch.bfloat16) * 0.05)(D, F)), 'w_down': _w((lambda *s: torch.randn(*s, dtype=torch.bfloat16) * 0.05)(F, D))}
    _B_in = _B_setup()
    return {'A_x': _A_in['x'], 'A_mem0': _A_in['mem0'], 'A_Wq': _A_in['Wq'], 'A_Wk': _A_in['Wk'], 'A_Wv': _A_in['Wv'], 'A_Wo': _A_in['Wo'], 'A_seg_len': _A_in['seg_len'], 'B_x': _B_in['x'], 'B_w_gate': _B_in['w_gate'], 'B_w_up': _B_in['w_up'], 'B_w_down': _B_in['w_down'], 'gate_w': _w((lambda *s: torch.randn(*s, dtype=torch.bfloat16) * 0.05)(576) * 16.0)}

def reference(A_x, A_mem0, A_Wq, A_Wk, A_Wv, A_Wo, A_seg_len, B_x, B_w_gate, B_w_up, B_w_down, gate_w):

    def _A_ref(x, mem0, Wq, Wk, Wv, Wo, seg_len):
        B, S, Dm = x.shape
        H, Dh = (Wq.shape[1], Wq.shape[2])
        M = mem0.shape[1]
        scale = Dh ** (-0.5)
        n_seg = S // seg_len
        L = M + seg_len
        idx = torch.arange(L)
        mask = (idx[:, None] < M) | (idx[:, None] >= idx[None, :])
        mem = mem0
        outs = []
        for s in range(n_seg):
            xs = x[:, s * seg_len:(s + 1) * seg_len, :].clone()
            h = torch.concatenate([mem, xs], axis=1)
            q = torch.einsum('btd,dhe->bhte', h, Wq)
            k = torch.einsum('btd,dhe->bhte', h, Wk)
            v = torch.einsum('btd,dhe->bhte', h, Wv)
            scores = torch.einsum('bhqe,bhke->bhqk', q, k) * scale
            scores = torch.where(mask[None, None], scores, -1000000000.0)
            p = _softmax(scores, axis=-1)
            o = torch.einsum('bhqk,bhke->bhqe', p, v)
            o = torch.einsum('bhte,hed->btd', o, Wo)
            mem = o[:, :M, :].clone()
            outs.append(o[:, M:, :])
        return torch.concatenate(outs, axis=1)

    def _B_ref(x, w_gate, w_up, w_down):
        g = _silu(x @ w_gate)
        u = x @ w_up
        return g * u @ w_down
    x = A_x
    g = _sigmoid((x * gate_w).sum(-1, keepdims=True))
    a = _A_ref(x, A_mem0, A_Wq, A_Wk, A_Wv, A_Wo, A_seg_len)
    b = _B_ref(x, B_w_gate, B_w_up, B_w_down)
    return g * a + (1 - g) * b
```

```python
import re

REG_RE = re.compile(r'^(v|a|s)(\d+)$')
RNG_RE = re.compile(r'^(v|a|s)\[(\d+):(\d+)\]$')

def parse_reg(tok):
    tok = tok.strip()
    m = REG_RE.match(tok)
    if m: return [(m.group(1), int(m.group(2)))]
    m = RNG_RE.match(tok)
    if m: return [(m.group(1), i) for i in range(int(m.group(2)), int(m.group(3)) + 1)]
    if tok == 'vcc': return [('x', 'vcc')]
    if tok in ('vcc_lo', 'vcc_hi'): return [('x', 'vcc')]
    if tok in ('exec', 'exec_lo', 'exec_hi'): return [('x', 'exec')]
    if tok == 'm0': return [('x', 'm0')]
    return []

TRANS = ('v_exp_f32', 'v_log_f32', 'v_rcp_f32', 'v_rsq_f32', 'v_sqrt_f32', 'v_sin_f32', 'v_cos_f32')

class I:
    __slots__ = ('txt', 'op', 'rd', 'wr', 'kind', 'prio', 'lat', 'tag', 'passes', 'srcc', 'nosched', 'early')
    def __init__(self, txt, rd=(), wr=(), tag=None, lat=None):
        self.txt = txt.strip()
        self.tag = tag
        self.passes = 0
        self.srcc = []
        self.early = 0
        body = self.txt.split(';')[0].strip()
        parts = body.split(None, 1)
        self.op = op = parts[0] if parts else ''
        ops = []
        if len(parts) > 1:
            cur = ''; depth = 0
            for ch in parts[1]:
                if ch == '[': depth += 1
                if ch == ']': depth -= 1
                if ch == ',' and depth == 0:
                    ops.append(cur.strip()); cur = ''
                else: cur += ch
            ops.append(cur.strip())
        mods = []
        if ops:
            l = ops[-1].split()
            if len(l) > 1:
                ops[-1] = l[0]; mods = l[1:]
        def clean(t):
            t = t.strip()
            if t.startswith('-'): t = t[1:]
            if t.startswith('abs(') and t.endswith(')'): t = t[4:-1]
            if t.startswith('|') and t.endswith('|'): t = t[1:-1]
            return t
        ops = [clean(o) for o in ops]
        R = []; W = []
        kind = None
        base = re.sub(r'_(e32|e64|dpp|sdwa)$', '', op)
        if op.endswith(':') or op == '' or op.startswith('.'):
            kind = 'label'
        elif op.startswith('v_smfmac'):
            kind = 'smfmac'; W += parse_reg(ops[0]); R += parse_reg(ops[0]); self.srcc = parse_reg(ops[0])
            for o in ops[1:4]: R += parse_reg(o)
            self.passes = 8 if '32x32' in op else 4
        elif op.startswith('v_mfma'):
            kind = 'mfma'; W += parse_reg(ops[0])
            for o in ops[1:4]: R += parse_reg(o)
            self.srcc = parse_reg(ops[3])
            self.passes = 8 if '32x32' in op else 4
        elif op.startswith('ds_read') or op.startswith('ds_bpermute') or op.startswith('ds_swizzle') or op.startswith('ds_permute'):
            kind = 'ds_rd'; W += parse_reg(ops[0])
            for o in ops[1:]: R += parse_reg(o)
        elif op.startswith('ds_write') or op.startswith('ds_add') :
            kind = 'ds_wr'
            for o in ops: R += parse_reg(o)
        elif op.startswith('buffer_load') or op.startswith('global_load'):
            if 'lds' in mods or '_lds_' in op:
                kind = 'vm_lds'
                for o in ops: R += parse_reg(o)
                R.append(('x', 'm0'))
            else:
                kind = 'vm_ld'; W += parse_reg(ops[0])
                for o in ops[1:]: R += parse_reg(o)
                if 'd16' in op: R += parse_reg(ops[0])
        elif op.startswith('buffer_store') or op.startswith('global_store'):
            kind = 'vm_st'
            for o in ops: R += parse_reg(o)
        elif op.startswith('buffer_atomic') or op.startswith('global_atomic'):
            kind = 'vm_at'
            if 'sc0' in mods:
                if op.startswith('global'):
                    W += parse_reg(ops[0])
                    for o in ops[1:]: R += parse_reg(o)
                else:
                    W += parse_reg(ops[0])
                    for o in ops: R += parse_reg(o)
            else:
                for o in ops: R += parse_reg(o)
        elif op.startswith('buffer_wbl2') or op.startswith('buffer_inv'):
            kind = 'vm_st'
        elif op.startswith('s_load') or op.startswith('s_memtime') or op.startswith('s_memrealtime') or op.startswith('s_buffer_load'):
            kind = 'smem'; W += parse_reg(ops[0])
            for o in ops[1:]: R += parse_reg(o)
        elif op in ('s_waitcnt', 's_barrier', 's_nop', 's_sleep', 's_endpgm', 's_setprio', 's_branch', 's_sethalt') or op.startswith('s_cbranch'):
            kind = 'ctl'
            if op in ('s_cbranch_scc0', 's_cbranch_scc1'): R.append(('x', 'scc'))
            if op in ('s_cbranch_vccz', 's_cbranch_vccnz'): R.append(('x', 'vcc'))
            if op in ('s_cbranch_execz', 's_cbranch_execnz'): R.append(('x', 'exec'))
        elif op.startswith('s_'):
            kind = 'salu'
            if op.startswith('s_cmp') or op.startswith('s_bitcmp'):
                for o in ops: R += parse_reg(o)
                W.append(('x', 'scc'))
            else:
                W += parse_reg(ops[0])
                for o in ops[1:]: R += parse_reg(o)
                if op in ('s_getreg_b32', 's_getpc_b64'): R = []
                if op.startswith('s_cselect') or op.startswith('s_addc') or op.startswith('s_subb') or op.startswith('s_cmov'):
                    R.append(('x', 'scc'))
                if op.startswith('s_cmov') or op in ('s_addk_i32', 's_mulk_i32', 's_bitset1_b32', 's_bitset0_b32'): R += parse_reg(ops[0])
                if not (op.startswith('s_mov') or op.startswith('s_cselect') or op.startswith('s_mul') or op.startswith('s_getreg') or op.startswith('s_movk') or op.startswith('s_cmov') or op.startswith('s_bfm') or op.startswith('s_getpc') or op.startswith('s_brev') or op.startswith('s_ff') or op.startswith('s_pack')):
                    W.append(('x', 'scc'))
                if 'saveexec' in op:
                    W.append(('x', 'exec')); R.append(('x', 'exec'))
        elif op.startswith('v_'):
            kind = 'trans' if base in TRANS else 'valu'
            if op.startswith('v_cmpx'):
                W += parse_reg(ops[0]); W.append(('x', 'exec'))
                for o in ops[1:]: R += parse_reg(o)
            elif op.startswith('v_cmp'):
                W += parse_reg(ops[0])
                for o in ops[1:]: R += parse_reg(o)
            elif 'permlane' in op and 'swap' in op:
                for o in ops[:2]:
                    W += parse_reg(o); R += parse_reg(o)
            elif base in ('v_add_co_u32', 'v_sub_co_u32', 'v_subrev_co_u32', 'v_addc_co_u32', 'v_subb_co_u32', 'v_mad_u64_u32', 'v_div_scale_f32'):
                W += parse_reg(ops[0]); W += parse_reg(ops[1])
                for o in ops[2:]: R += parse_reg(o)
            else:
                W += parse_reg(ops[0])
                for o in ops[1:]: R += parse_reg(o)
                if base in ('v_fmac_f32', 'v_pk_fmac_f16', 'v_dot2c_f32_bf16', 'v_writelane_b32', 'v_mac_f32', 'v_dot2c_f32_f16') or 'dpp' in op or any(m.startswith('row_') or m.startswith('quad_perm') or m.startswith('wave_') for m in mods) or base.startswith('v_cvt_sr') or any(m.startswith('dst_sel') or m.startswith('op_sel') for m in mods):
                    R += parse_reg(ops[0])
                if base == 'v_cndmask_b32' and len(ops) == 3: R.append(('x', 'vcc'))
            if kind in ('valu', 'trans') : R.append(('x', 'exec'))
        else:
            raise ValueError('unknown op: ' + txt)
        if kind in ('smfmac', 'mfma', 'ds_rd', 'ds_wr', 'vm_ld', 'vm_lds', 'vm_st', 'vm_at'):
            R.append(('x', 'exec'))
        self.kind = kind
        self.rd = set(R) | set(('m', t) for t in rd)
        self.wr = set(W) | set(('m', t) for t in wr)
        self.lat = lat
        self.prio = 0
        self.nosched = False
    def is_dpp(self):
        return 'dpp' in self.op or any(k in self.txt for k in (' row_', ' quad_perm', ' wave_'))
    def __repr__(self): return self.txt

VALU_KINDS = ('valu', 'trans')
MAT = ('mfma', 'smfmac')

def issue_cost(i):
    k = i.kind
    if k == 'smfmac': return (4, 12, 4 * i.passes)
    if k == 'mfma': return (4, 8, 4 * i.passes)
    if k == 'trans': return (4, 8, 0)
    if k == 'valu':
        if 'permlane' in i.op: return (4, 8, 0)
        return (4, 4, 0)
    if k == 'salu': return (4, 0, 0)
    if k in ('label',): return (0, 0, 0)
    if k in ('vm_ld', 'vm_st', 'vm_lds'): return (16 if 'x4' in i.op else 8, 0, 0)
    return (4, 0, 0)

def latency(p, c, reg):
    if p.lat is not None and p.kind in ('ds_rd', 'vm_ld', 'vm_lds', 'ds_wr', 'vm_st'): return p.lat
    k = p.kind
    if k in MAT:
        if c.kind in MAT and reg in c.srcc and reg in p.wr: return 4 * p.passes
        return 4 * (p.passes + 5)
    if k == 'trans': return 12
    if k == 'valu':
        if c.kind in MAT: return 12
        if 'permlane' in c.op or c.is_dpp(): return 12
        return 5
    if k == 'ds_rd': return 84
    if k == 'vm_ld': return 400
    if k == 'vm_lds': return 500
    if k == 'salu': return 2
    if k == 'smem': return 100
    if k == 'ds_wr': return 4
    return 4

def schedule(insts, verbose=False):
    n = len(insts)
    succ = [[] for _ in range(n)]
    npred = [0] * n
    lastw = {}; readers = {}
    edges = {}
    def add(a, b, lat):
        if a == b: return
        key = (a, b)
        if key in edges:
            edges[key] = max(edges[key], lat)
        else:
            edges[key] = lat
    last_vm = None
    for j, ins in enumerate(insts):
        for r in ins.rd:
            if r == ('x', 'exec') and r not in lastw: continue
            if r in lastw:
                add(lastw[r], j, latency(insts[lastw[r]], ins, r))
        for r in ins.wr:
            if r in lastw:
                p = insts[lastw[r]]
                l = 1
                if p.kind in MAT and not (ins.kind in MAT): l = 4 * (p.passes + 5)
                if p.kind in ('ds_rd', 'vm_ld'): l = latency(p, ins, r)
                add(lastw[r], j, l)
            for q in readers.get(r, []):
                pr = insts[q]
                l = 1
                if pr.kind in MAT and r in pr.srcc and ins.kind in VALU_KINDS: l = 4 * pr.passes
                add(q, j, l)
        for r in ins.rd:
            readers.setdefault(r, []).append(j)
        for r in ins.wr:
            lastw[r] = j; readers[r] = []
        if ins.kind in ('vm_ld', 'vm_lds', 'vm_st', 'vm_at'):
            if last_vm is not None: add(last_vm, j, 1)
            last_vm = j
    for (a, b), l in edges.items():
        succ[a].append((b, l)); npred[b] += 1
    prio = [0] * n
    for j in range(n - 1, -1, -1):
        c = issue_cost(insts[j])
        best = max(c)
        for (b, l) in succ[j]:
            best = max(best, l + prio[b])
        prio[j] = best + insts[j].prio
    if n == 0: return [], 0
    ready_t = [insts[j].early for j in range(n)]
    done = [False] * n
    avail = [j for j in range(n) if npred[j] == 0]
    t = 0; valu_free = 0; mat_free = 0; lds_free = 0
    out = []
    while avail:
        best = None
        for j in avail:
            ins = insts[j]
            st = max(t, ready_t[j])
            if ins.kind in VALU_KINDS or ins.kind in MAT: st = max(st, valu_free)
            if ins.kind in MAT: st = max(st, mat_free)
            if ins.kind in ('ds_rd', 'ds_wr'): st = max(st, lds_free)
            key = (st, -prio[j], j)
            if best is None or key < best[0]: best = (key, j)
        st0 = best[0][0]
        cand = None
        for j in avail:
            ins = insts[j]
            st = max(t, ready_t[j])
            if ins.kind in VALU_KINDS or ins.kind in MAT: st = max(st, valu_free)
            if ins.kind in MAT: st = max(st, mat_free)
            if ins.kind in ('ds_rd', 'ds_wr'): st = max(st, lds_free)
            if st <= st0 + 3:
                key = (-prio[j], j)
                if cand is None or key < cand[0]: cand = (key, j, st)
        _, j, st = cand
        ins = insts[j]
        c = issue_cost(ins)
        t = st + c[0]
        if ins.kind in VALU_KINDS or ins.kind in MAT: valu_free = st + c[1]
        if ins.kind in MAT: mat_free = st + c[2]
        if ins.kind == 'ds_rd': lds_free = st + (16 if 'b128' in ins.op else 8)
        if ins.kind == 'ds_wr': lds_free = st + (16 if ('b128' in ins.op) else 8)
        out.append((st, ins))
        avail.remove(j)
        for (b, l) in succ[j]:
            ready_t[b] = max(ready_t[b], st + l)
            npred[b] -= 1
            if npred[b] == 0: avail.append(b)
    assert len(out) == n
    if verbose:
        for st, ins in out: print(f'{st:6d} {ins.txt}')
    return [x[1] for x in out], (out[-1][0] if out else 0)

def insert_waits(insts, vm_in=0, lgkm_in=0):
    out = []
    vmq = []
    lgq = []
    pend_v = {}
    pend_l = {}
    vm_seq = 0; lg_seq = 0
    vm_done = 0; lg_done = 0
    smem_out = False
    for ins in insts:
        if ins.kind == 'label' or (ins.kind == 'ctl' and ins.op in ('s_branch',)) or (ins.kind == 'ctl' and ins.op.startswith('s_cbranch')):
            need_v = max([s for s in pend_v.values()], default=0)
            need_l = max([s for s in pend_l.values()], default=0)
            w = []
            if need_v > vm_done and not getattr(ins, 'early', 0) == -1:
                w.append(f'vmcnt({0 if ins.kind=="label" else vm_seq - need_v})')
            if need_l > lg_done or smem_out:
                w.append(f'lgkmcnt({0 if (smem_out or ins.kind=="label") else lg_seq - need_l})')
            out.append(ins)
            if ins.kind == 'label':
                pass
            continue
        if ins.op == 's_waitcnt':
            m = re.search(r'vmcnt\((\d+)\)', ins.txt)
            if m:
                vm_done = max(vm_done, vm_seq - int(m.group(1)))
            m = re.search(r'lgkmcnt\((\d+)\)', ins.txt)
            if m:
                lg_done = max(lg_done, lg_seq - int(m.group(1)))
                if int(m.group(1)) == 0: smem_out = False
            for r in [r for r, s in pend_v.items() if s <= vm_done]: del pend_v[r]
            for r in [r for r, s in pend_l.items() if s <= lg_done]: del pend_l[r]
            out.append(ins); continue
        touched = ins.rd | ins.wr
        need_v = max([pend_v[r] for r in touched if r in pend_v], default=0)
        need_l = max([pend_l[r] for r in touched if r in pend_l], default=0)
        w = []
        if need_v > vm_done:
            cnt = vm_seq - need_v
            cnt = min(cnt, 63)
            w.append(f'vmcnt({cnt})'); vm_done = max(vm_done, vm_seq - cnt)
        if need_l > lg_done:
            if smem_out: cnt = 0
            else: cnt = min(lg_seq - need_l, 15)
            w.append(f'lgkmcnt({cnt})'); lg_done = max(lg_done, lg_seq - cnt)
            if cnt == 0: smem_out = False
        if w:
            out.append(I('s_waitcnt ' + ' '.join(w)))
            for r in [r for r, s in pend_v.items() if s <= vm_done]: del pend_v[r]
            for r in [r for r, s in pend_l.items() if s <= lg_done]: del pend_l[r]
        out.append(ins)
        if ins.kind in ('vm_ld', 'vm_lds', 'vm_st', 'vm_at'):
            vm_seq += 1
            if ins.kind in ('vm_ld', 'vm_at', 'vm_lds'):
                for r in ins.wr: pend_v[r] = vm_seq
        if ins.kind in ('ds_rd', 'ds_wr'):
            lg_seq += 1
            if ins.kind == 'ds_rd':
                for r in ins.wr:
                    if r[0] != 'm': pend_l[r] = lg_seq
        if ins.kind == 'smem':
            lg_seq += 1; smem_out = True
            for r in ins.wr: pend_l[r] = lg_seq
    return out

def states(ins):
    if ins.op == 's_nop':
        return int(ins.txt.split()[1], 0) + 1
    if ins.kind == 'label': return 0
    return 1

def insert_nops(insts):
    out = []
    tim = []
    last_mat = [None]
    def next_time(ins):
        t = (tim[-1] + 4 * max(states(out[-1]), 1 if out[-1].kind != 'label' else 0)) if out else 0
        if ins.kind in MAT and last_mat[0] is not None:
            t = max(t, last_mat[0])
        return t
    def push(ins):
        t = next_time(ins)
        out.append(ins); tim.append(t)
        if ins.kind in MAT: last_mat[0] = t + 4 * ins.passes
    for ins in insts:
        if ins.kind == 'label':
            push(ins); continue
        need = 0
        tnow = next_time(ins)
        for idx in range(len(out) - 1, -1, -1):
            p = out[idx]
            dist = (tnow - tim[idx]) // 4 - 1
            if dist >= 21: break
            if p.kind != 'label':
                req = 0
                pw = p.wr;
                vr = set(r for r in ins.rd if r[0] in 'va'); vw = set(r for r in ins.wr if r[0] in 'va')
                if p.kind in VALU_KINDS:
                    if ins.kind in MAT and (pw & vr): req = max(req, 2)
                    if ins.kind in VALU_KINDS and ('permlane' in ins.op) and (pw & (vr | vw)): req = max(req, 2)
                    if ins.kind in VALU_KINDS and ins.is_dpp() and (pw & vr): req = max(req, 2)
                    if ins.op.startswith('v_readlane') or ins.op.startswith('v_readfirstlane'):
                        if pw & vr: req = max(req, 1)
                    sw = set(r for r in pw if r[0] == 's' or r == ('x', 'vcc'))
                    if sw:
                        if ins.kind in VALU_KINDS and (sw & ins.rd): req = max(req, 2)
                        if ins.kind in ('vm_ld', 'vm_lds', 'vm_st', 'vm_at') and (sw & ins.rd): req = max(req, 5)
                        if (ins.op.startswith('v_readlane') or ins.op.startswith('v_writelane')) and (sw & ins.rd): req = max(req, 4)
                        if ins.kind in ('salu', 'ctl') and (sw & ins.rd) and ins.kind == 'salu': req = max(req, 1)
                    if p.kind == 'trans' and ins.kind in ('valu',) + MAT + ('ds_wr', 'vm_st') and (pw & vr): req = max(req, 1 if ins.kind == 'valu' else 2)
                    if ('x', 'exec') in pw:
                        if ins.kind in MAT: req = max(req, 4)
                        if ins.kind in VALU_KINDS and ins.is_dpp(): req = max(req, 5)
                        if 'permlane' in ins.op or ins.op.startswith('v_readlane') or ins.op.startswith('v_readfirstlane'): req = max(req, 4)
                    if any(m in p.txt for m in ('op_sel', 'dst_sel')) and ins.kind in VALU_KINDS and (pw & (vr | vw)): req = max(req, 1)
                if p.kind in MAT:
                    D = pw
                    P = p.passes
                    big = {2: 5, 4: 8, 8: 12, 16: 20}[P]
                    ovl = {2: 4, 4: 6, 8: 10, 16: 18}[P]
                    if ins.kind in MAT:
                        sc = set(ins.srcc)
                        if D & sc:
                            if sc == D and ins.passes == P: pass
                            else: req = max(req, ovl)
                        ab = vr - sc
                        if D & ab: req = max(req, big)
                        if (D & vw) and not (D & sc): req = max(req, ovl)
                    else:
                        if D & (vr | vw): req = max(req, big)
                    if ins.kind in VALU_KINDS and (set(p.srcc) & vw):
                        req = max(req, {2: 1, 4: 3, 8: 7, 16: 15}[P])
                if p.kind == 'vm_st' and ('x4' in p.op or 'x3' in p.op):
                    if ins.kind in VALU_KINDS + MAT + ('ds_rd', 'vm_ld') and (set(r for r in p.rd if r[0] in 'va') & vw): req = max(req, 2)
                if p.kind == 'salu' and ('x', 'm0') in pw and ('x', 'm0') in ins.rd: req = max(req, 1)
                if p.kind == 'salu' and ('x', 'exec') in pw and ins.kind in MAT: req = max(req, 1)
                if req > dist: need = max(need, (tim[idx] + 4 * (req + 1)))
        if need > tnow:
            base = (tim[-1] + 4 * max(states(out[-1]), 1 if out[-1].kind != 'label' else 0))
            n = -(-(need - base) // 4)
            while n > 0:
                k = min(n, 16)
                push(I(f's_nop {k-1}'))
                n -= k
        push(ins)
    return out

class Block:
    def __init__(self):
        self.items = []
        self.cur = None
    def raw(self, txt, **kw):
        if not self.items or self.items[-1][0] != 'raw': self.items.append(('raw', []))
        for line in txt.strip().split('\n'):
            line = line.strip()
            if not line or line.startswith(';'): continue
            self.items[-1][1].append(I(line, **kw))
    def begin(self, name=''):
        self.items.append(('sched', [], name))
    def e(self, txt, **kw):
        assert self.items and self.items[-1][0] == 'sched'
        prio = kw.pop('prio', 0); early = kw.pop('early', 0)
        for line in txt.strip().split('\n'):
            line = line.strip()
            if not line: continue
            i = I(line, **kw); i.prio = prio; i.early = early
            self.items[-1][1].append(i)
    def finish(self, verbose=False, do_sched=True):
        lin = []
        for it in self.items:
            if it[0] == 'raw' or not do_sched: lin += it[1]
            else:
                s, tend = schedule(it[1], verbose=verbose)
                if verbose or True:
                    lin.append(I(f'; --- region {it[2]} est {tend} cycles') if False else I('s_nop 0') if False else None)
                    lin.pop()
                print(f'region {it[2]}: {len(s)} insts, est {tend} cycles')
                lin += s
        lin = insert_waits(lin)
        lin = insert_nops(lin)
        return lin

def text(insts):
    o = []
    for i in insts:
        o.append(i.txt if i.kind == 'label' else '  ' + i.txt)
    return '\n'.join(o) + '\n'

def simulate(lin, verbose=False, lds_lat=56, nw=4):
    t = 0; valu_free = 0; mat_free = 0; lds_free = 0; ta_free = 0
    lq = []; vq = []
    marks = []
    for ins in lin:
        k = ins.kind
        if k == 'label':
            marks.append((ins.txt, t)); continue
        st = t
        if ins.op == 's_waitcnt':
            m = re.search(r'lgkmcnt\((\d+)\)', ins.txt)
            if m:
                n = int(m.group(1))
                while len(lq) > n: st = max(st, lq.pop(0))
            m = re.search(r'vmcnt\((\d+)\)', ins.txt)
            if m:
                n = int(m.group(1))
                while len(vq) > n: st = max(st, vq.pop(0))
            t = max(st, t + 4)
        elif ins.op == 's_nop':
            t = st + 4 * states(ins)
        elif ins.op == 's_barrier':
            t = st + 16; marks.append(('barrier', t))
        elif k in ('valu', 'trans'):
            st = max(st, valu_free); c = 8 if (k == 'trans' or 'permlane' in ins.op) else 4
            valu_free = st + c; t = st + 4
        elif k in MAT:
            st = max(st, valu_free, mat_free); valu_free = st + (12 if k == 'smfmac' else 8); mat_free = st + 4 * ins.passes; t = st + 4
        elif k in ('ds_rd', 'ds_wr'):
            if 'b128' in ins.op: svc = 4 * nw if k == 'ds_rd' else 8 * nw
            elif 'b64' in ins.op or 'read2' in ins.op: svc = 2 * nw if k == 'ds_rd' else 4 * nw
            else: svc = 2 * nw
            s0 = max(st + 4, lds_free); lds_free = s0 + svc
            lq.append(lds_free + lds_lat - svc * (nw - 1) // nw); t = st + 4
        elif k in ('vm_ld', 'vm_st', 'vm_lds', 'vm_at'):
            svc = (16 if 'x4' in ins.op else 8 if 'x2' in ins.op else 4) * nw
            s0 = max(st, ta_free - 64); ta_free = max(ta_free, s0) + svc
            vq.append(ta_free + 250); t = s0 + 4
        else:
            t = st + 4
        if verbose: print(f'{st:6d} {ins.txt}')
    marks.append(('end', t))
    return marks
```

```python
from gemm import *
DPPM = 'row_mask:0xf bank_mask:0xf'
def gen_attn_unit(b, s_seg, s_h, tag=''):
    Q = [[8 + 16*tq + 4*k for k in range(4)] for tq in range(2)]
    KX = [[40 + 16*t + 4*k for k in range(4)] for t in range(2)]
    KM = [72 + 4*k for k in range(4)]
    VX = [88 + 4*T for T in range(8)]
    VM = [120 + 4*w for w in range(4)]
    S = 136
    SRD = f's[{G_OSRD}:{G_OSRD+3}]'
    b.raw(f"""
      v_and_b32 v1, 63, v0
      v_lshlrev_b32 v2, 4, v1                 ; lane*16
      s_lshl_b32 s{G_T0}, s{s_seg}, 5
      s_add_u32 s{G_T0}, s{G_T0}, s{s_h}       ; u = seg*32+h
      s_lshl_b32 s{G_T1}, s{G_T0}, 13          ; *8192
      s_lshl_b32 s{G_T2}, s{G_T0}, 12          ; *4096
    """)
    b.begin('attn_ld')
    e = b.e
    def loads(base_sreg, region, regs, n, tmp):
        e(f's_add_u32 s{tmp}, s{base_sreg}, {region}')
        for i in range(n):
            if i == 4:
                e(f's_add_u32 s{tmp}, s{tmp}, 4096')
            e(f'buffer_load_dwordx4 {R(regs[i])}, v2, {SRD}, s{tmp} offen offset:{(i & 3)*1024}')
    loads(G_T1, WS_QX, Q[0] + Q[1], 8, G_T3)
    loads(G_T2, WS_KM, KM, 4, G_T3)
    loads(G_T1, WS_KX, KX[0] + KX[1], 8, G_T3)
    loads(G_T2, WS_VM, VM, 4, G_T3)
    loads(G_T1, WS_VX, VX, 8, G_T3)
    ONES = 160; ONH = 164; NEG = 166; C = 167; NN = 168; G4 = 169
    for i in range(4): e(f'v_mov_b32 v{ONES+i}, 0x3f803f80')
    for i in range(2): e(f'v_mov_b32 v{ONH+i}, 0x3f80')
    e(f'v_mov_b32 v{NEG}, 0xff800000')
    e(f'v_and_b32 v{NN}, 15, v1')
    e(f'v_lshrrev_b32 v{G4}, 4, v1')
    e(f'v_lshlrev_b32 v{G4}, 2, v{G4}')
    cval = hex(int(np.float32(128**-0.5 * np.log2(np.e)).view(np.uint32)))
    e(f's_mov_b32 s{G_K}, {cval}')
    for i in range(4):
        e(f'v_add_u32 v170, {i}, v{G4}')
        e(f'v_cmp_le_u32 s[{64+2*i}:{65+2*i}], v170, v{NN}')
    for tq in range(2):
        sm, s0, s1 = S + 12*tq, S + 12*tq + 4, S + 12*tq + 8
        for k in range(4):
            e(f'v_mfma_f32_16x16x32_bf16 {R(sm)}, {R(KM[k])}, {R(Q[tq][k])}, ' + ('0' if k == 0 else R(sm)))
            e(f'v_mfma_f32_16x16x32_bf16 {R(s0)}, {R(KX[0][k])}, {R(Q[tq][k])}, ' + ('0' if k == 0 else R(s0)))
            if tq == 1: e(f'v_mfma_f32_16x16x32_bf16 {R(s1)}, {R(KX[1][k])}, {R(Q[tq][k])}, ' + ('0' if k == 0 else R(s1)))
    O = 176
    for tq in range(2):
        sm, s0, s1 = S + 12*tq, S + 12*tq + 4, S + 12*tq + 8
        diag = s0 if tq == 0 else s1
        for i in range(4): e(f'v_cndmask_b32 v{diag+i}, v{NEG}, v{diag+i}, s[{64+2*i}:{65+2*i}]')
        vals = [sm, sm+1] + [s0+i for i in range(4)] + ([s1+i for i in range(4)] if tq == 1 else [])
        MX, TT = 212 + 2*tq, 213 + 2*tq
        e(f'v_max3_f32 v{MX}, v{vals[0]}, v{vals[1]}, v{vals[2]}')
        rest = vals[3:]
        while len(rest) >= 2:
            e(f'v_max3_f32 v{MX}, v{MX}, v{rest[0]}, v{rest[1]}'); rest = rest[2:]
        if rest: e(f'v_max_f32 v{MX}, v{MX}, v{rest[0]}')
        for sw in ('16', '32'):
            e(f'v_mov_b32 v{TT}, v{MX}')
            e(f'v_permlane{sw}_swap_b32 v{MX}, v{TT}')
            e(f'v_max_f32 v{MX}, v{MX}, v{TT}')
        e(f'v_mul_f32 v{MX}, s{G_K}, v{MX}')
        for r in vals:
            e(f'v_fma_f32 v{r}, v{r}, s{G_K}, -v{MX}')
            e(f'v_exp_f32 v{r}, v{r}')
        PB = 216 + 8*tq; PM = PB + 4
        e(f'v_cvt_pk_bf16_f32 v{PB}, v{s0}, v{s0+1}')
        e(f'v_cvt_pk_bf16_f32 v{PB+1}, v{s0+2}, v{s0+3}')
        if tq == 1:
            e(f'v_cvt_pk_bf16_f32 v{PB+2}, v{s1}, v{s1+1}')
            e(f'v_cvt_pk_bf16_f32 v{PB+3}, v{s1+2}, v{s1+3}')
        else:
            e(f'v_mov_b32 v{PB+2}, 0'); e(f'v_mov_b32 v{PB+3}, 0')
        e(f'v_cvt_pk_bf16_f32 v{PM}, v{sm}, v{sm}')
        e(f'v_cvt_pk_bf16_f32 v{PM+1}, v{sm+1}, v{sm+1}')
        SUM = 208
        e(f'v_mfma_f32_16x16x32_bf16 {R(SUM)}, {R(ONES)}, {R(PB)}, 0')
        e(f'v_mfma_f32_16x16x16_bf16 {R(SUM)}, {R(ONH,2)}, {R(PM,2)}, {R(SUM)}')
        for T in range(8):
            o = O + 4*T
            e(f'v_mfma_f32_16x16x32_bf16 {R(o)}, {R(VX[T])}, {R(PB)}, 0')
            e(f'v_mfma_f32_16x16x16_bf16 {R(o)}, {R(VM[T >> 1] + 2*(T & 1), 2)}, {R(PM,2)}, {R(o)}')
        RS = 232 + tq
        e(f'v_rcp_f32 v{RS}, v{SUM}')
        if tq == 0:
            e(f's_lshl_b32 s{G_T0}, s{s_seg}, 7')
            e(f's_lshl_b32 s{G_T1}, s{s_h}, 2')
            e(f's_add_u32 s{G_T0}, s{G_T0}, s{G_T1}')
            e(f's_lshl_b32 s{G_T0}, s{G_T0}, 11')
            e(f's_add_u32 s{G_T0}, s{G_T0}, {WS_O}')
            e(f's_add_u32 s{G_T1}, s{G_T0}, 4096')
            e(f'v_lshlrev_b32 v171, 7, v{G4}')
            e(f'v_lshlrev_b32 v172, 4, v{NN}')
            e(f'v_add_u32 v171, v171, v172')
        for T2 in range(4):
            d = 236 + 4*T2
            for hh in range(2):
                o = O + 4*(2*T2 + hh)
                for i in range(4): e(f'v_mul_f32 v{o+i}, v{o+i}, v{RS}')
                e(f'v_cvt_pk_bf16_f32 v{d+2*hh}, v{o}, v{o+1}')
                e(f'v_cvt_pk_bf16_f32 v{d+2*hh+1}, v{o+2}, v{o+3}')
            so = G_T0 if T2 < 2 else G_T1
            e(f'buffer_store_dwordx4 {R(d)}, v171, {SRD}, s{so} offen offset:{(T2 & 1)*2048 + tq*256}')
    b.raw('s_waitcnt vmcnt(0)')
```

```python
from asmgen import *
from layout import *

LDS_MEM = 0
LDS_SP = 9216
LDS_SPM = 13312
LDS_OX = 17408
LDS_ASEL = 19712
LDS_DUMP = 19968
LDS_DUMP2 = 20224
LDS_ONES = 20864
LDS_ONH = 21888
LDS_W = 24576
W_PER_WAVE = 17 * 2048

L16, IDX, WBASE, OXW, IDN, _idn1, OXR, PUBI, RDL, PFO = range(10)
def R(b, n=4): return f'v[{b}:{b+n-1}]'
M = [10, 14, 18]
WB = [22, 30]
AQ = [38, 42]; AK = [46, 50]
KX = [54, 58]; VX = [62, 66]
T0, T1 = 70, 71

S_WS = 4
S_H, S_W, S_STEP = 8, 9, 10
S_INBW = 11
S_IMGR, S_IMGW = 12, 13
S_KXO, S_VXO, S_KMO, S_VMO = 16, 17, 18, 19
S_C = 20
S_T0, S_T1, S_T2, S_T3 = 21, 22, 23, 24
S_G0, S_G2 = 25, 27
S_INBR = 28
S_PUB = 29
S_LIM = 30
S_CNT = 31
S_Q8 = 33
S_MASK = 34
S_SPW4 = 37
S_NSTEP = 38
S_TAG = 39
S_TS = 40
S_ARMG, S_ARMG2 = 55, 56
S_PFD = 57
S_ACC = 84
S_DBG = 62
D_KV_IDX = 24
SRD = f's[{S_WS}:{S_WS+3}]'
OOB = 0x40000000

def placement():
    ops = operand_list()
    lds = [('k1', c) for c in range(9)] + [('o%d' % i, 1) for i in range(8)]
    place = {}
    for n, o in enumerate(lds): place[o] = ('l', n)
    regs = [('a', 8*i) for i in range(32)] + [('v', 72 + 8*i) for i in range(23)]
    k = 0
    for o in ops:
        if o not in place:
            place[o] = regs[k]; k += 1
    assert k == 55
    return ops, place
OPS, PLACE = placement()
def wreg(o):
    p = PLACE[o]
    return f'{p[0]}[{p[1]}:{p[1]+7}]'
def smf(acc, a, bop): return f'v_smfmac_f32_16x16x64_bf16 {R(acc)}, {R(a)}, {bop}, v{IDX}'
def wread(f, dst, o, **kw):
    n = PLACE[o][1]
    f(f'ds_read_b128 {R(dst)}, v{WBASE} offset:{n*2048}', **kw)
    f(f'ds_read_b128 {R(dst+4)}, v{WBASE} offset:{n*2048+1024}', **kw)
def zero(f, dst, **kw):
    f(f'v_mov_b64 {R(dst,2)}, 0', **kw); f(f'v_mov_b64 {R(dst+2,2)}, 0', **kw)

def stamp(b, i, dbg):
    if dbg:
        b.raw(f'''s_memtime s[{S_TS}:{S_TS+1}]
                  s_waitcnt lgkmcnt(0)
                  s_sub_u32 s{S_TS+3}, s{S_TS}, s{S_TS+2}
                  s_add_u32 s{S_ACC+i}, s{S_ACC+i}, s{S_TS+3}
                  s_mov_b32 s{S_TS+2}, s{S_TS}''')
def sleep(n): return ('s_sleep %d' % n) if n else ''
DPPM = 'row_mask:0xf bank_mask:0xf'

ABL = 0
def qk4(e, p, m):
    e(smf(AK[0], m, wreg(('k0', p))))
    e(smf(AQ[0], m, wreg(('q0', p))))
    e(smf(AQ[1], m, wreg(('q1', p))))
    e(smf(AK[1], m, R(WB[p % 2], 8) if not (ABL & 2) else wreg(('k0', p))))

def gen_kxvx(b, nxt):
    d = 32*8192 if nxt else 0
    b.raw(f'''
      s_add_u32 s{S_KXO}, s{S_KXO}, {d}
      s_add_u32 s{S_VXO}, s{S_VXO}, {d}
      s_add_u32 s{S_T0}, s{S_KXO}, 4096
      s_add_u32 s{S_T1}, s{S_VXO}, 1024
      buffer_load_dwordx4 {R(KX[0])}, v{L16}, {SRD}, s{S_KXO} offen
      buffer_load_dwordx4 {R(KX[1])}, v{L16}, {SRD}, s{S_T0} offen
      buffer_load_dwordx4 {R(VX[0])}, v{L16}, {SRD}, s{S_VXO} offen
      buffer_load_dwordx4 {R(VX[1])}, v{L16}, {SRD}, s{S_T1} offen
    ''')

def gen_gissue(b, tag, gdelay):
    b.raw(f"""
      s_add_u32 s{S_T0}, s{S_IMGR}, s{S_G0}
      s_add_u32 s{S_T1}, s{S_T0}, 4096
      s_add_u32 s{S_T2}, s{S_IMGR}, s{S_G2}
      {sleep(gdelay)}
      buffer_load_dwordx4 {R(M[0])}, v{L16}, {SRD}, s{S_T0} offen sc1
      buffer_load_dwordx4 {R(M[1])}, v{L16}, {SRD}, s{S_T1} offen sc1
      buffer_load_dword v18, v19, {SRD}, s{S_T2} offen sc1
    """)

def gen_gprep(b):
    for c in range(2): wread(b.raw, WB[c], ('k1', c))
    b.raw(f"""
      v_add_u32 v{T0}, s{S_G0}, v{L16}
      v_lshrrev_b32 v19, 2, v{L16}
      v_add_u32 v{T1}, s{S_SPW4}, v19
      s_mov_b32 s{S_CNT}, 0
    """)

def gen_step(b, sc1_store, dbg=False, tag='', nv1=2, exit_label='L_end', gsleep=0, rdelay=0, gdelay=0, rwait=1, noex=0, abl=0, pfprio=-600, kvcheck=0):
    global ABL
    ABL = abl
    ST = ' sc1' if sc1_store else ''
    tail = Block()
    b.raw(f"""
L_step{tag}:
      s_waitcnt vmcnt(0)
      v_max3_u32 v20, v10, v11, v12
      v_max3_u32 v21, v13, v14, v15
      v_max3_u32 v20, v20, v16, v17
      v_max3_u32 v20, v20, v21, v18
      v_cmp_eq_u32 vcc, -1, v20
      {'' if noex else 's_cbranch_vccnz L_gretry' + tag}
L_gok{tag}:
      ds_write_b128 v{T0}, {R(M[0])}
      ds_write_b128 v{T0}, {R(M[1])} offset:4096
      ds_write_b32 v{T1}, v18 offset:8192
    """)
    tail.raw(f"""
L_gretry{tag}:
      s_add_u32 s{S_CNT}, s{S_CNT}, 1
      s_add_u32 s{S_ACC+6}, s{S_ACC+6}, 1
      s_cmp_gt_u32 s{S_CNT}, s{S_LIM}
      s_cbranch_scc1 L_gfail{tag}
      {sleep(gsleep)}
      buffer_load_dwordx4 {R(M[0])}, v{L16}, {SRD}, s{S_T0} offen sc1
      buffer_load_dwordx4 {R(M[1])}, v{L16}, {SRD}, s{S_T1} offen sc1
      buffer_load_dword v18, v19, {SRD}, s{S_T2} offen sc1
      s_branch L_step{tag}
L_gfail{tag}:
      s_mov_b32 s{S_LIM}, 0
      s_branch L_gok{tag}
    """)
    qk4(b.raw, 0, M[0])
    b.raw('s_waitcnt lgkmcnt(0)\ns_barrier')
    stamp(b, 0, dbg)
    AV = [22, 26]; X = 30
    XD = AQ
    SM, SX0, SX1 = 46, 50, 38
    MG = 42; MGM = 34
    b.begin('A')
    e = b.e
    def memread(p, **kw):
        m = M[p % 3]
        if p == 8:
            e(f'ds_read_b128 {R(m)}, v{L16} offset:{8192}', **kw); return
        d = DELTA[p]
        if (d & 3) == 0: reg = T0
        else:
            reg = T1
            if not (d & 4): e(f'v_xor_b32 v{T1}, {(d & 3) << 10}, v{T0}', **kw)
        e(f'ds_read_b128 {R(m)}, v{reg} offset:{(d & 4) * 1024}', **kw)
    memread(2, prio=2000)
    memread(3, prio=1950)
    wread(e, WB[0], ('k1', 2), prio=1900)
    e(f's_add_u32 s{S_T3}, s{S_KXO}, {32*8192}')
    e(f'buffer_load_dword v{PFO}, {SRD}, s{S_T3} offen lds', prio=(pfprio))
    for p in range(1, 9):
        m = M[p % 3]
        qk4(e, p, m)
        if p + 3 < 9: memread(p + 3)
        if p + 2 < 9 and not (ABL & 2): wread(e, WB[p % 2], ('k1', p + 2))
    if ABL & 1:
        stamp(b, 8, dbg)
        b.begin('A2')
    if abl & 64: e = lambda *a, **k: None
    for t in range(2): zero(e, AV[t])
    for c in range(3):
        e(f'ds_read_b128 {R(M[c])}, v{L16} offset:{LDS_MEM + c*1024}')
    for t in range(2):
        e(f'v_add_f32 v{AK[t]}, v{AK[t]}, v{AK[t]+1}', prio=200)
        e(f'v_add_f32 v{AK[t]+2}, v{AK[t]+2}, v{AK[t]+3}', prio=200)
        e(f'v_add_f32 v{AQ[t]}, v{AQ[t]}, v{AQ[t]+1}', prio=200)
        e(f'v_add_f32 v{AQ[t]+2}, v{AQ[t]+2}, v{AQ[t]+3}', prio=200)
        e(f'v_cvt_pk_bf16_f32 v{AK[t]}, v{AK[t]}, v{AK[t]+2}', prio=200)
        e(f'v_cvt_pk_bf16_f32 v{AK[t]+1}, v{AQ[t]}, v{AQ[t]+2}', prio=200)
        e(f'v_mfma_f32_16x16x16_bf16 {R(XD[t])}, {R(AK[t],2)}, {R(IDN,2)}, 0', prio=200)
        e(f'v_cvt_pk_bf16_f32 v{X+2*t}, v{XD[t]}, v{XD[t]+1}', prio=200)
        e(f'v_cvt_pk_bf16_f32 v{X+2*t+1}, v{XD[t]+2}, v{XD[t]+3}', prio=200)
    e(f'v_mfma_f32_16x16x32_bf16 {R(SX0)}, {R(KX[0])}, {R(X)}, 0', prio=200)
    e(f'v_mfma_f32_16x16x32_bf16 {R(SX1)}, {R(KX[1])}, {R(X)}, 0', prio=200)
    e(f'v_mfma_f32_16x16x32_bf16 {R(SM)}, {R(X)}, {R(X)}, 0', prio=200)
    e(f'buffer_store_dwordx4 {R(X)}, v{L16}, {SRD}, s{S_KMO} offen', prio=-400)
    e(f's_mov_b64 vcc, s[{S_MASK}:{S_MASK+1}]')
    for i in range(4):
        e(f'v_cndmask_b32_dpp v{MG+i}, v{SX1+i}, v{SX0+i}, vcc quad_perm:[2,3,2,3] {DPPM}', prio=200)
    e(f'v_cndmask_b32_dpp v{MGM}, v{SM+1}, v{SM}, vcc quad_perm:[2,3,2,3] {DPPM}', prio=200)
    e(f'ds_write_b128 v{T0}, {R(MG)} offset:{LDS_SP}', prio=200)
    e(f'ds_write_b32 v{T0}, v{MGM} offset:{LDS_SPM}', prio=200)
    for c in range(nv1):
        m = M[c % 3]
        e(smf(AV[0], m, wreg(('v0', c))), prio=-300)
        e(smf(AV[1], m, wreg(('v1', c))), prio=-300)
        if c + 3 < 9: e(f'ds_read_b128 {R(m)}, v{L16} offset:{LDS_MEM + (c+3)*1024}', prio=-300)
    b.raw('s_waitcnt lgkmcnt(0)\ns_barrier')
    stamp(b, 1, dbg)
    b.begin('B')
    e = b.e
    if abl & 16: e = lambda *a, **k: None
    TP = [38, 42, 46, 50]
    for w in range(4): e(f'ds_read_b128 {R(TP[w])}, v{L16} offset:{LDS_SP + w*1024}', prio=500)
    o0 = LDS_SPM // 256
    e(f'ds_read2st64_b32 v[30:31], v{L16} offset0:{o0} offset1:{o0+4}', prio=500)
    e(f'ds_read2st64_b32 v[32:33], v{L16} offset0:{o0+8} offset1:{o0+12}', prio=500)
    e(f'v_mov_b64 v[34:35], -1', prio=400)
    e(f'buffer_store_dwordx2 v[34:35], v{PUBI}, {SRD}, s{S_ARMG} offen{ST}', prio=400)
    e(f'buffer_store_dword v34, v{PUBI}, {SRD}, s{S_ARMG2} offen{ST}', prio=400)
    e(f'buffer_store_dword v34, v{PUBI}, {SRD}, s{S_ARMG2} offen offset:32{ST}', prio=400)
    S = [38, 39, 40, 41]; SMm = 30
    for i in range(4):
        e(f'v_add_f32 v{TP[0]+i}, v{TP[0]+i}, v{TP[1]+i}', prio=300)
        e(f'v_add_f32 v{TP[2]+i}, v{TP[2]+i}, v{TP[3]+i}', prio=300)
        e(f'v_add_f32 v{TP[0]+i}, v{TP[0]+i}, v{TP[2]+i}', prio=300)
    e(f'v_add_f32 v30, v30, v31', prio=300)
    e(f'v_add_f32 v32, v32, v33', prio=300)
    e(f'v_add_f32 v30, v30, v32', prio=300)
    MX, TT = 42, 43
    e(f'v_max3_f32 v{MX}, v38, v39, v40', prio=300)
    e(f'v_max3_f32 v{MX}, v{MX}, v41, v30', prio=300)
    e(f'v_max_f32_dpp v{MX}, v{MX}, v{MX} quad_perm:[2,3,0,1] {DPPM}', prio=300)
    e(f'v_mov_b32 v{TT}, v{MX}', prio=300)
    e(f'v_permlane16_swap_b32 v{MX}, v{TT}', prio=300)
    e(f'v_max_f32 v{MX}, v{MX}, v{TT}', prio=300)
    e(f'v_mov_b32 v{TT}, v{MX}', prio=300)
    e(f'v_permlane32_swap_b32 v{MX}, v{TT}', prio=300)
    e(f'v_max_f32 v{MX}, v{MX}, v{TT}', prio=300)
    e(f'v_mul_f32 v{MX}, s{S_C}, v{MX}', prio=300)
    for r in S + [SMm]:
        e(f'v_fma_f32 v{r}, v{r}, s{S_C}, -v{MX}', prio=300)
        e(f'v_exp_f32 v{r}, v{r}', prio=300)
    PB = 44; PM = 32
    e(f'v_cvt_pk_bf16_f32 v{PB}, v38, v39', prio=300)
    e(f'v_cvt_pk_bf16_f32 v{PB+1}, v40, v41', prio=300)
    e(f'v_cvt_pk_bf16_f32 v{PM}, v30, v30', prio=300)
    e(f'v_mov_b32_dpp v{PB+2}, v{PB} quad_perm:[0,1,0,1] {DPPM}', prio=300)
    e(f'v_mov_b32_dpp v{PB+3}, v{PB+1} quad_perm:[0,1,0,1] {DPPM}', prio=300)
    e(f'v_mov_b32_dpp v{PM+1}, v{PM} quad_perm:[0,1,0,1] {DPPM}', prio=300)
    for c in range(nv1, 9):
        m = M[c % 3]
        e(smf(AV[0], m, wreg(('v0', c))))
        e(smf(AV[1], m, wreg(('v1', c))))
        if c + 3 < 9: e(f'ds_read_b128 {R(m)}, v{L16} offset:{LDS_MEM + (c+3)*1024}')
    VD = 22
    e(f'v_cvt_pk_bf16_f32 v{VD}, v{AV[0]}, v{AV[0]+1}')
    e(f'v_cvt_pk_bf16_f32 v{VD+1}, v{AV[0]+2}, v{AV[0]+3}')
    e(f'v_cvt_pk_bf16_f32 v{VD+2}, v{AV[1]}, v{AV[1]+1}')
    e(f'v_cvt_pk_bf16_f32 v{VD+3}, v{AV[1]+2}, v{AV[1]+3}')
    e(f'buffer_store_dwordx4 {R(VD)}, v{L16}, {SRD}, s{S_VMO} offen', prio=-500)
    ONES = 48; ONH = 52; AO = [38, 10]; SUM = 34; RS = 42
    BW = [54, 62, 22, 30]
    e(f'ds_read_b128 {R(ONES)}, v{L16} offset:{LDS_ONES}')
    e(f'ds_read_b64 {R(ONH,2)}, v{L16} offset:{LDS_ONH}')
    wread(e, BW[0], ('o0', 1), prio=-200)
    e(f'v_mfma_f32_16x16x32_bf16 {R(SUM)}, {R(ONES)}, {R(PB)}, 0')
    e(f'v_mfma_f32_16x16x16_bf16 {R(SUM)}, {R(ONH,2)}, {R(PM,2)}, {R(SUM)}')
    for t in range(2):
        e(f'v_mfma_f32_16x16x32_bf16 {R(AO[t])}, {R(VX[t])}, {R(PB)}, 0')
        e(f'v_mfma_f32_16x16x16_bf16 {R(AO[t])}, {R(VD+2*t,2)}, {R(PM,2)}, {R(AO[t])}')
    e(f'v_rcp_f32 v{RS}, v{SUM}')
    for t in range(2):
        for i in range(4): e(f'v_mul_f32 v{AO[t]+i}, v{AO[t]+i}, v{RS}')
        e(f'v_cvt_pk_bf16_f32 v{AO[t]}, v{AO[t]}, v{AO[t]+1}')
        e(f'v_cvt_pk_bf16_f32 v{AO[t]+1}, v{AO[t]+2}, v{AO[t]+3}')
        e(f'ds_write_b64 v{OXW}, {R(AO[t],2)} offset:{t*32}')
    b.raw(f"""
      s_cmp_eq_u32 s{S_STEP}, s{S_NSTEP}
      s_cbranch_scc1 {exit_label}
      s_waitcnt lgkmcnt(0)
      s_barrier
    """)
    stamp(b, 2, dbg)
    b.begin('C')
    e = b.e
    if abl & 32: e = lambda *a, **k: None
    OA = [14, 18]; ACC = [38, 42, 46, 50]; PK = 10
    for c2 in range(2): e(f'ds_read_b128 {R(OA[c2])}, v{OXR} offset:{c2*128}', prio=500)
    for i in range(1, 4): wread(e, BW[i], ('o%d' % i, 1), prio=400 - i)
    for i in range(4): zero(e, ACC[i], prio=300)
    e(f'v_lshrrev_b32 v{T1}, 2, v{L16}', prio=300)
    for i in range(9):
        a = ACC[i % 4]
        if i >= 4: zero(e, a)
        e(smf(a, OA[0], wreg(('o%d' % i, 0))))
        if i < 8:
            e(smf(a, OA[1], R(BW[i % 4], 8)))
            if i + 4 < 8: wread(e, BW[i % 4], ('o%d' % (i + 4), 1))
        else:
            e(smf(a, OA[1], wreg(('o8', 1))))
        e(f'v_add_f32 v{a}, v{a}, v{a+1}')
        e(f'v_add_f32 v{a+2}, v{a+2}, v{a+3}')
        if i < 8 and i % 2 == 1:
            p = ACC[(i - 1) % 4]
            k = (i // 2) % 2
            e(f'v_cvt_pk_bf16_f32 v{PK+k}, v{p}, v{a}')
            e(f'v_cvt_pk_bf16_f32 v{PK+2+k}, v{p+2}, v{a+2}')
            if i % 4 == 3:
                e(f'v_bfi_b32 v{PK}, 1, s{S_TAG}, v{PK}')
                e(f'buffer_store_dwordx4 {R(PK)}, v{L16}, {SRD}, s{S_INBW} offen offset:{(i//4)*1024}{ST}')
        if i == 8:
            e(f'v_cvt_pk_bf16_f32 v{T0}, v{a}, v{a+2}')
            e(f'v_bfi_b32 v{T0}, 1, s{S_TAG}, v{T0}')
            e(f'buffer_store_dword v{T0}, v{T1}, {SRD}, s{S_Q8} offen{ST}')
    stamp(b, 3, dbg)
    LD = [10, 14, 18, 22, 26, 30, 34, 54]
    ASEL = 58; RA = 62; BAD = 66
    def adv1(f):
        f(f"""
      s_add_u32 s{S_STEP}, s{S_STEP}, 1
      s_add_u32 s{S_KMO}, s{S_KMO}, {32*4096}
      s_add_u32 s{S_VMO}, s{S_VMO}, {32*4096}
      s_xor_b32 s{S_INBW}, s{S_INBW}, 0x80000
      s_xor_b32 s{S_Q8}, s{S_Q8}, 0x80000
      s_add_u32 s{S_T0}, s{S_IMGR}, s{S_PUB}
      s_cmp_eq_u32 s{S_W}, 0
      s_cselect_b32 s{S_ARMG}, s{S_T0}, {OOB}
      s_cmp_eq_u32 s{S_W}, 1
      s_cselect_b32 s{S_ARMG2}, s{S_T0}, {OOB}
        """)
    def adv2(f):
        f(f"""
      s_lshr_b32 s{S_TAG}, s{S_STEP}, 1
      s_and_b32 s{S_TAG}, s{S_TAG}, 1
      s_xor_b32 s{S_INBR}, s{S_INBR}, 0x80000
      {'s_nop 0' if noex else 's_mov_b32 s%d, s%d' % (S_IMGR, S_IMGW)}
      s_add_u32 s{S_IMGW}, s{S_IMGW}, 9216
      s_cmp_eq_u32 s{S_IMGW}, {WS_IMG + 3*9216}
      s_cselect_b32 s{S_IMGW}, {WS_IMG}, s{S_IMGW}
        """)
    def zall(f):
        for a in AQ + AK: zero(f, a)
    if noex:
        zall(b.raw); adv1(b.raw); gen_kxvx(b, nxt=True) if not (abl & 8) else None
        adv2(b.raw); gen_gprep(b)
    else:
        b.raw(f"""
      s_cmp_lg_u32 s{S_W}, 0
      s_cbranch_scc1 L_rother{tag}
      v_and_b32 v{T0}, 0xf0, v{L16}
      ds_read_b128 {R(ASEL)}, v{T0} offset:{LDS_ASEL}
        """)
        zall(b.raw); adv1(b.raw)
        b.raw(f"""
      s_mov_b32 s{S_CNT}, 0
      v_mov_b32 v{BAD}, 0
      {'s_waitcnt vmcnt(0)' if rwait else ''}
      {sleep(rdelay)}
L_rpoll{tag}:
      s_mov_b32 s{S_T0}, s{S_INBR}
        """)
        for i in range(8):
            b.raw(f'buffer_load_dwordx4 {R(LD[i])}, v{RDL}, {SRD}, s{S_T0} offen sc1')
            if i < 7: b.raw(f's_add_u32 s{S_T0}, s{S_T0}, {4*9216}')
        b.raw(f"""
      s_add_u32 s{S_T1}, s{S_IMGW}, s{S_PUB}
      s_waitcnt lgkmcnt(0)
        """)
        if dbg: stamp(b, 8, dbg)
        for i in range(8):
            b.raw(f's_waitcnt vmcnt({7-i})')
            b.raw(f'v_mfma_f32_16x16x32_bf16 {R(RA)}, {R(ASEL)}, {R(LD[i])}, ' + ('0' if i == 0 else R(RA)))
            b.raw(f'v_bitop3_b32 v{BAD}, v{BAD}, v{LD[i]}, s{S_TAG} bitop3:0xf6')
        b.raw(f"""
      v_and_b32 v{BAD}, 1, v{BAD}
      v_cmp_ne_u32 vcc, 0, v{BAD}
      s_cbranch_vccnz L_rretry{tag}
L_rok{tag}:
      s_nop 3
      v_cvt_pk_bf16_f32 v{T0}, v{RA}, v{RA+1}
      v_cvt_pk_bf16_f32 v{T1}, v{RA+2}, v{RA+3}
      buffer_store_dwordx2 v[{T0}:{T1}], v{PUBI}, {SRD}, s{S_T1} offen{ST}
        """)
        if dbg: stamp(b, 5, dbg)
        gen_kxvx(b, nxt=True)
        b.raw(f'L_rjoin{tag}:')
        adv2(b.raw); gen_gprep(b)
        b.raw('s_barrier')
        tail.raw(f"""
L_rretry{tag}:
      s_add_u32 s{S_CNT}, s{S_CNT}, 1
      s_add_u32 s{S_ACC+7}, s{S_ACC+7}, 1
      v_mov_b32 v{BAD}, 0
      s_cmp_le_u32 s{S_CNT}, s{S_LIM}
      s_cbranch_scc1 L_rpoll{tag}
      s_mov_b32 s{S_LIM}, 0
      s_nop 7
      s_branch L_rok{tag}
L_rother{tag}:
      s_cmp_eq_u32 s{S_W}, 1
      s_cbranch_scc1 L_r8{tag}
        """)
        gen_kxvx(tail, nxt=True)
        zall(tail.raw); adv1(tail.raw)
        if kvcheck:
            tail.raw(f"""
      s_add_u32 s{S_T0}, s{S_STEP}, 1
      s_and_b32 s{S_T1}, s{S_T0}, 7
      s_cmp_lg_u32 s{S_T1}, 0
      s_cbranch_scc1 L_rjoin{tag}
      s_cmp_ge_u32 s{S_T0}, 64
      s_cbranch_scc1 L_rjoin{tag}
      s_lshr_b32 s{S_T0}, s{S_T0}, 3
      s_add_u32 s{S_T0}, s{S_T0}, {D_KV_IDX}
      s_lshl_b32 s{S_T0}, s{S_T0}, 2
      s_mov_b32 s{S_CNT}, 0
L_kvpoll{tag}:
      v_mov_b32 v10, s{S_T0}
      global_load_dword v11, v10, s[{S_DBG}:{S_DBG+1}] sc1
      s_waitcnt vmcnt(0)
      v_readfirstlane_b32 s{S_T1}, v11
      s_add_u32 s{S_CNT}, s{S_CNT}, 1
      s_cmp_gt_u32 s{S_CNT}, 400000
      s_cbranch_scc1 L_rjoin{tag}
      s_cmp_lt_u32 s{S_T1}, 32
      s_cbranch_scc1 L_kvpoll{tag}
            """)
        tail.raw(f"""
      s_branch L_rjoin{tag}
L_r8{tag}:
      v_and_b32 v{T0}, 0xf0, v{L16}
      ds_read_b128 {R(ASEL)}, v{T0} offset:{LDS_ASEL}
        """)
        zall(tail.raw); adv1(tail.raw)
        tail.raw(f"""
      s_mov_b32 s{S_CNT}, 0
      s_add_u32 s{S_T1}, s{S_IMGW}, s{S_PUB}
      {'s_waitcnt vmcnt(0)' if rwait else ''}
      {sleep(rdelay)}
L_rpoll8{tag}:
      buffer_load_dwordx4 v[10:13], v{RDL}, {SRD}, s{S_INBR} offen sc1
      s_add_u32 s{S_CNT}, s{S_CNT}, 1
      s_cmp_gt_u32 s{S_CNT}, s{S_LIM}
      s_cbranch_scc1 L_rfail8{tag}
      s_waitcnt vmcnt(0) lgkmcnt(0)
      v_mfma_f32_16x16x32_bf16 {R(RA)}, {R(ASEL)}, v[10:13], 0
      v_xor_b32 v{BAD}, s{S_TAG}, v10
      v_bitop3_b32 v{BAD}, v{BAD}, v11, s{S_TAG} bitop3:0xf6
      v_bitop3_b32 v{BAD}, v{BAD}, v12, s{S_TAG} bitop3:0xf6
      v_bitop3_b32 v{BAD}, v{BAD}, v13, s{S_TAG} bitop3:0xf6
      v_and_b32 v{BAD}, 1, v{BAD}
      v_cmp_ne_u32 vcc, 0, v{BAD}
      s_cbranch_vccnz L_rpoll8{tag}
      s_branch L_rok8{tag}
L_rfail8{tag}:
      s_mov_b32 s{S_LIM}, 0
      s_waitcnt vmcnt(0) lgkmcnt(0)
      v_mfma_f32_16x16x32_bf16 {R(RA)}, {R(ASEL)}, v[10:13], 0
      s_nop 7
L_rok8{tag}:
      s_nop 2
        """)
        for st in (2, 4, 8):
            for i in range(4):
                tail.raw(f'v_add_f32_dpp v{RA+i}, v{RA+i}, v{RA+i} row_ror:{st} {DPPM}')
        tail.raw(f"""
      v_cvt_pk_bf16_f32 v{T0}, v{RA}, v{RA+2}
      v_cvt_pk_bf16_f32 v{T1}, v{RA+1}, v{RA+3}
      buffer_store_dword v{T0}, v{PUBI}, {SRD}, s{S_T1} offen{ST}
      buffer_store_dword v{T1}, v{PUBI}, {SRD}, s{S_T1} offen offset:32{ST}
        """)
        gen_kxvx(tail, nxt=True)
        tail.raw(f's_branch L_rjoin{tag}')
    stamp(b, 4, dbg)
    if not (abl & 8): gen_gissue(b, tag, gdelay)
    b.raw(f's_branch L_step{tag}')
    b.items += tail.items
    return b

def gen_setup(b):
    cval = hex(int(np.float32(128**-0.5 * np.log2(np.e)).view(np.uint32)))
    b.raw(f"""
      v_lshrrev_b32 v10, 6, v0
      v_and_b32 v11, 63, v0                 ; lane
      s_nop 0
      v_readfirstlane_b32 s{S_W}, v10
      v_lshlrev_b32 v{L16}, 4, v11
      v_lshrrev_b32 v12, 4, v11             ; g
      v_and_b32 v13, 15, v11                ; n
      v_and_b32 v14, 1, v11
      v_mov_b32 v15, 0x4444
      v_mov_b32 v16, 0xeeee
      v_cmp_eq_u32 vcc, 1, v14
      v_cndmask_b32 v{IDX}, v15, v16, vcc
      s_mul_i32 s{S_T0}, s{S_W}, {W_PER_WAVE}
      s_add_u32 s{S_T0}, s{S_T0}, {LDS_W}
      v_add_u32 v{WBASE}, s{S_T0}, v{L16}
      v_lshlrev_b32 v14, 2, v12             ; 4g
      v_sub_u32 v14, v13, v14               ; n - 4g
      v_mov_b32 v15, 0x3f80
      v_mov_b32 v16, 0x3f800000
      v_cmp_eq_u32 vcc, 0, v14
      v_cndmask_b32 v17, 0, v15, vcc
      v_cmp_eq_u32 vcc, 1, v14
      v_cndmask_b32 v{IDN}, v17, v16, vcc
      v_cmp_eq_u32 vcc, 2, v14
      v_cndmask_b32 v17, 0, v15, vcc
      v_cmp_eq_u32 vcc, 3, v14
      v_cndmask_b32 v{IDN+1}, v17, v16, vcc
      v_lshrrev_b32 v14, 2, v13
      v_lshlrev_b32 v14, 1, v14
      v_and_b32 v15, 1, v13
      v_add_u32 v14, v14, v15
      v_mul_u32_u24 v14, 288, v14
      v_lshlrev_b32 v15, 3, v12
      s_lshl_b32 s{S_T0}, s{S_W}, 6
      s_add_u32 s{S_T0}, s{S_T0}, {LDS_OX}
      v_add3_u32 v14, v14, v15, s{S_T0}
      v_lshlrev_b32 v15, 3, v11
      v_add_u32 v15, {LDS_DUMP2}, v15
      v_and_b32 v16, 2, v13
      v_cmp_eq_u32 vcc, 2, v16
      v_cndmask_b32 v{OXW}, v15, v14, vcc
      ; OXR
      v_lshrrev_b32 v14, 1, v13
      v_mul_u32_u24 v14, 288, v14
      v_lshlrev_b32 v15, 5, v12
      v_and_b32 v16, 1, v13
      v_lshlrev_b32 v16, 4, v16
      v_add3_u32 v14, v14, v15, v16
      v_add_u32 v{OXR}, {LDS_OX}, v14
      v_lshlrev_b32 v14, 5, v12
      v_lshrrev_b32 v15, 2, v13
      v_lshlrev_b32 v15, 8, v15
      v_and_b32 v16, 2, v13
      v_lshlrev_b32 v16, 3, v16
      v_add3_u32 v14, v14, v15, v16
      v_and_b32 v16, 1, v13
      v_lshlrev_b32 v16, 3, v16
      v_add_u32 v14, v14, v16
      v_mov_b32 v15, {OOB}
      v_cmp_gt_u32 vcc, 2, v12
      v_cndmask_b32 v{PUBI}, v15, v14, vcc
      v_mul_u32_u24 v14, 9216, v12
      v_lshlrev_b32 v15, 4, v13
      v_add_u32 v{RDL}, v14, v15
      v_and_b32 v14, 15, v11
      v_lshlrev_b32 v14, 6, v14
      v_and_b32 v15, 16, v11
      v_lshlrev_b32 v15, 8, v15
      v_add_u32 v15, v14, v15
      v_and_b32 v16, 31, v11
      v_lshlrev_b32 v16, 6, v16
      s_lshl_b32 s{S_T0}, s{S_W}, 10
      s_add_u32 s{S_T0}, s{S_T0}, {WS_VX - WS_KX}
      v_add_u32 v16, s{S_T0}, v16
      v_cmp_gt_u32 vcc, 32, v11
      v_cndmask_b32 v{PFO}, v16, v15, vcc
      ; scalars
      s_mov_b32 s{S_C}, {cval}
      s_mov_b32 s{S_MASK}, 0xcccccccc
      s_mov_b32 s{S_MASK+1}, 0xcccccccc
      s_lshl_b32 s{S_SPW4}, s{S_W}, 8
      s_lshl_b32 s{S_G0}, s{S_W}, 10
      s_lshl_b32 s{S_G2}, s{S_W}, 8
      s_add_u32 s{S_G2}, s{S_G2}, 8192
      s_mov_b32 s{S_STEP}, 0
      s_mov_b32 s{S_TAG}, 0
      s_mov_b32 s{S_NSTEP}, 63
      s_mov_b32 s{S_LIM}, 200000
      s_mov_b32 m0, {LDS_DUMP}
      s_mul_i32 s{S_T0}, s{S_H}, 9216
      s_lshl_b32 s{S_T1}, s{S_W}, 11
      s_add_u32 s{S_INBW}, s{S_T0}, s{S_T1}
      s_add_u32 s{S_INBW}, s{S_INBW}, {WS_INBOX}
      s_lshl_b32 s{S_T1}, s{S_W}, 8
      s_add_u32 s{S_Q8}, s{S_T0}, s{S_T1}
      s_add_u32 s{S_Q8}, s{S_Q8}, {WS_INBOX + 8192}
      s_mov_b32 s{S_IMGR}, {WS_IMG}
      s_mov_b32 s{S_IMGW}, {WS_IMG + 9216}
      s_lshl_b32 s{S_T0}, s{S_H}, 13
      s_lshl_b32 s{S_T1}, s{S_W}, 10
      s_add_u32 s{S_KXO}, s{S_T0}, s{S_T1}
      s_add_u32 s{S_VXO}, s{S_KXO}, s{S_T1}
      s_add_u32 s{S_KXO}, s{S_KXO}, {WS_KX}
      s_add_u32 s{S_VXO}, s{S_VXO}, {WS_VX}
      s_lshl_b32 s{S_T0}, s{S_H}, 12
      s_add_u32 s{S_KMO}, s{S_T0}, s{S_T1}
      s_add_u32 s{S_KMO}, s{S_KMO}, {WS_KM}
      s_add_u32 s{S_VMO}, s{S_T0}, s{S_T1}
      s_add_u32 s{S_VMO}, s{S_VMO}, {WS_VM}
      s_mov_b32 s{S_ARMG}, {OOB}
      s_mov_b32 s{S_ARMG2}, {OOB}
      s_lshr_b32 s{S_T1}, s{S_H}, 2
      s_and_b32 s{S_T2}, s{S_H}, 3
      s_lshl_b32 s{S_T1}, s{S_T1}, 10
      s_lshl_b32 s{S_T3}, s{S_T2}, 8
      s_add_u32 s{S_INBR}, s{S_T1}, s{S_T3}
      s_add_u32 s{S_INBR}, s{S_INBR}, {WS_INBOX}
      s_lshl_b32 s{S_T3}, s{S_T2}, 6
      s_add_u32 s{S_PUB}, s{S_T1}, s{S_T3}
      s_cmp_eq_u32 s{S_W}, 1
      s_cbranch_scc0 L_setup_no8
      s_lshr_b32 s{S_T1}, s{S_H}, 3
      s_and_b32 s{S_T2}, s{S_H}, 7
      s_lshl_b32 s{S_T3}, s{S_T1}, 8
      s_lshl_b32 s{S_T0}, s{S_T2}, 5
      s_add_u32 s{S_INBR}, s{S_T3}, s{S_T0}
      s_add_u32 s{S_INBR}, s{S_INBR}, {WS_INBOX + 8192}
      v_lshrrev_b32 v14, 1, v11
      v_mul_u32_u24 v14, 9216, v14
      v_and_b32 v15, 1, v11
      v_lshlrev_b32 v15, 4, v15
      v_add_u32 v{RDL}, v14, v15
      s_lshl_b32 s{S_T3}, s{S_T1}, 2
      s_add_u32 s{S_PUB}, s{S_T3}, 8192
      s_lshl_b32 s{S_T2}, s{S_T2}, 1
      v_add_u32 v14, s{S_T2}, v13           ; c
      v_and_b32 v15, 3, v14
      v_lshlrev_b32 v15, 4, v15
      v_lshrrev_b32 v16, 2, v14
      v_lshlrev_b32 v16, 2, v16
      v_add3_u32 v14, v15, v16, v12
      v_lshlrev_b32 v14, 4, v14
      v_mov_b32 v15, {OOB}
      v_cmp_gt_u32 vcc, 2, v12
      v_cndmask_b32 v14, v15, v14, vcc
      v_cmp_gt_u32 vcc, 2, v13
      v_cndmask_b32 v{PUBI}, v15, v14, vcc
L_setup_no8:
    """)
    b.raw(f"""
      v_and_b32 v18, 1, v13
      v_lshlrev_b32 v18, 4, v18
      v_mov_b32 v19, 0x3f80
      v_lshlrev_b32 v19, v18, v19
      v_lshrrev_b32 v18, 1, v13
      v_cmp_eq_u32 vcc, 0, v18
      v_cndmask_b32 v14, 0, v19, vcc
      v_cmp_eq_u32 vcc, 1, v18
      v_cndmask_b32 v15, 0, v19, vcc
      v_cmp_eq_u32 vcc, 2, v18
      v_cndmask_b32 v16, 0, v19, vcc
      v_cmp_eq_u32 vcc, 3, v18
      v_cndmask_b32 v17, 0, v19, vcc
      v_lshlrev_b32 v18, 4, v13
      ds_write_b128 v18, v[14:17] offset:{LDS_ASEL}
      v_mov_b32 v14, 0x3f803f80
      v_mov_b32 v15, 0x3f803f80
      v_mov_b32 v16, 0x3f803f80
      v_mov_b32 v17, 0x3f803f80
      ds_write_b128 v{L16}, v[14:17] offset:{LDS_ONES}
      v_mov_b32 v14, 0x3f80
      v_mov_b32 v15, 0x3f80
      ds_write_b128 v{L16}, v[14:17] offset:{LDS_ONH}
    """)
```

```python
from asmgen import *
from layout import *

def R(b, n=4): return f'v[{b}:{b+n-1}]'
def A(b, n=16): return f'a[{b}:{b+n-1}]'

XF = [[16 + 16*s + 4*j for j in range(4)] for s in range(2)]
WF = [[48 + 16*s + 4*j for j in range(4)] for s in range(2)]
VXA = [80, 81, 82, 83]
VWA = [84, 85, 86, 87]
VDX = [88, 89]; VDW = 90
VT = 96
G_XSRD = 8
G_WSRD = 12
G_OSRD = 16
G_XOFF = 20
G_WOFF = 21
G_LDW4 = 22
G_WSTEP = 23
G_M0 = 24
G_M0W = 25
G_K = 26
G_T0, G_T1, G_T2, G_T3 = 27, 28, 29, 30
G_W = 31
G_STG = 32
LDX = 1152

def a_setup(b, ldw_reg_note=''):
    b.raw(f"""
      v_and_b32 v1, 63, v0                  ; lane
      v_and_b32 v2, 31, v1                  ; l&31
      v_lshrrev_b32 v3, 5, v1               ; hi
      s_lshr_b32 s{G_T0}, s{G_W}, 1          ; wm
      s_lshl_b32 s{G_T0}, s{G_T0}, 14        ; 128*128*wm
      v_lshlrev_b32 v4, 7, v2
      v_add_u32 v4, s{G_T0}, v4
      v_lshrrev_b32 v5, 1, v2
      v_and_b32 v5, 7, v5                   ; sw
      v_xor_b32 v5, v5, v3
      v_lshlrev_b32 v5, 4, v5
      v_add_u32 v{VXA[0]}, v4, v5
      v_xor_b32 v{VXA[1]}, 32, v{VXA[0]}
      v_xor_b32 v{VXA[2]}, 64, v{VXA[0]}
      v_xor_b32 v{VXA[3]}, 96, v{VXA[0]}
      v_lshrrev_b32 v4, 3, v1
      v_mul_u32_u24 v4, {LDX}, v4
      v_and_b32 v5, 7, v1
      v_lshrrev_b32 v6, 4, v1
      v_xor_b32 v5, v5, v6
      v_lshlrev_b32 v7, 4, v5
      v_add_u32 v{VDX[0]}, v4, v7
      v_xor_b32 v5, 4, v5
      v_lshlrev_b32 v7, 4, v5
      v_add_u32 v{VDX[1]}, v4, v7
    """)

def a_setup_w(b, hmode_sreg, ldw_sreg):
    b.raw(f"""
      v_and_b32 v1, 63, v0
      v_lshrrev_b32 v2, 4, v1               ; G
      v_and_b32 v3, 15, v1                  ; i
      v_lshrrev_b32 v4, 2, v3               ; r
      v_and_b32 v5, 3, v3                   ; c
      ; common = 32768 + (8*(G>>1) + r)*256 + ((2*(G&1) + (c>>1))<<4) + (c&1)*8
      v_lshrrev_b32 v6, 1, v2
      v_lshlrev_b32 v6, 3, v6
      v_add_u32 v6, v6, v4
      v_lshlrev_b32 v6, 8, v6
      v_and_b32 v7, 1, v2
      v_lshlrev_b32 v7, 1, v7
      v_lshrrev_b32 v8, 1, v5
      v_add_u32 v7, v7, v8
      v_lshlrev_b32 v7, 4, v7
      v_and_b32 v8, 1, v5
      v_lshlrev_b32 v8, 3, v8
      v_add3_u32 v6, v6, v7, v8
      v_add_u32 v6, 32768, v6
      v_lshlrev_b32 v7, 6, v4               ; r<<6  (4*r <<4)
      s_and_b32 s{G_T0}, s{G_W}, 1           ; wn
    """)
    for j in range(4):
        b.raw(f"""
      s_lshl_b32 s{G_T1}, s{G_T0}, 14
      s_mov_b32 s{G_T2}, {j << 6}
      s_lshl_b32 s{G_T3}, s{G_T0}, 7
      s_add_u32 s{G_T3}, s{G_T3}, {(j & 1) << 6}
      s_cmp_eq_u32 s{hmode_sreg}, 0
      s_cselect_b32 s{G_T1}, s{G_T1}, {(j >> 1) * 16384}
      s_cselect_b32 s{G_T2}, s{G_T2}, s{G_T3}
      v_xor_b32 v8, s{G_T2}, v7
      v_add3_u32 v{VWA[j]}, v6, v8, s{G_T1}
        """)
    b.raw(f"""
      v_lshrrev_b32 v2, 4, v1
      v_mul_lo_u32 v4, v2, s{ldw_sreg}
      v_lshlrev_b32 v5, 2, v2
      v_xor_b32 v5, v3, v5
      v_lshlrev_b32 v5, 4, v5
      v_add_u32 v{VDW}, v4, v5
    """)

def a_dma(f, **kw):
    f(f's_add_u32 m0, s{G_M0}, s{G_STG}', **kw)
    f(f's_mov_b32 s{G_T0}, s{G_XOFF}', **kw)
    for i in range(8):
        f(f'buffer_load_dwordx4 v{VDX[i & 1]}, s[{G_XSRD}:{G_XSRD+3}], s{G_T0} offen lds', **kw)
        if i < 7:
            f(f's_add_u32 m0, m0, 1024', **kw)
            f(f's_add_u32 s{G_T0}, s{G_T0}, {8*LDX}', **kw)
    f(f's_add_u32 m0, s{G_M0W}, s{G_STG}', **kw)
    f(f's_mov_b32 s{G_T0}, s{G_WOFF}', **kw)
    for i in range(8):
        f(f'buffer_load_dwordx4 v{VDW}, s[{G_WSRD}:{G_WSRD+3}], s{G_T0} offen lds', **kw)
        if i < 7:
            f(f's_add_u32 m0, m0, 1024', **kw)
            f(f's_add_u32 s{G_T0}, s{G_T0}, s{G_LDW4}', **kw)
    f(f's_add_u32 s{G_XOFF}, s{G_XOFF}, 128', **kw)
    f(f's_add_u32 s{G_WOFF}, s{G_WOFF}, s{G_WSTEP}', **kw)
    f(f's_xor_b32 s{G_STG}, s{G_STG}, 0x10000', **kw)

def a_reads(f, ks, st, **kw):
    for j in range(4):
        f(f'ds_read_b128 {R(XF[st][j])}, v{VXA[ks]} offset:{j*4096}', **kw)
    for j in range(4):
        for u in range(2):
            f(f'ds_read_b64_tr_b16 {R(WF[st][j]+2*u, 2)}, v{VWA[j]} offset:{ks*4096 + u*1024}', **kw)

def a_mfmas(f, st, vmode, first, **kw):
    for jf in range(4):
        for jt in range(4):
            acc = A(16 * (4*jf + jt))
            c = '0' if first else acc
            if vmode: f(f'v_mfma_f32_32x32x16_bf16 {acc}, {R(XF[st][jt])}, {R(WF[st][jf])}, {c}', **kw)
            else: f(f'v_mfma_f32_32x32x16_bf16 {acc}, {R(WF[st][jf])}, {R(XF[st][jt])}, {c}', **kw)

def a_flip(f):
    for r in VXA + VWA: f(f'v_xor_b32 v{r}, 0x10000, v{r}')

def a_step(b, vmode, first, dma, name):
    b.begin(name + 'a')
    e = b.e
    for ks in range(3):
        a_reads(e, ks + 1, (ks + 1) & 1)
        a_mfmas(e, ks & 1, vmode, first and ks == 0)
    b.raw('s_waitcnt vmcnt(0) lgkmcnt(0)\ns_barrier')
    b.begin(name + 'b')
    a_flip(e)
    a_reads(e, 0, 0, prio=500)
    if dma: a_dma(e)
    a_mfmas(e, 1, vmode, False)

def a_mainloop(b, vmode, tag):
    b.raw(f's_mov_b32 s{G_STG}, 0')
    a_dma(b.raw); a_dma(b.raw)
    b.raw('s_waitcnt vmcnt(16)\ns_barrier')
    a_reads(b.raw, 0, 0)
    a_step(b, vmode, True, True, 'k0')
    b.raw(f's_mov_b32 s{G_K}, 6\nL_ka{tag}:')
    a_step(b, vmode, False, True, 'kl')
    b.raw(f's_sub_u32 s{G_K}, s{G_K}, 1\ns_cmp_lg_u32 s{G_K}, 0\ns_cbranch_scc1 L_ka{tag}')
    a_step(b, vmode, False, False, 'k7')
    b.begin('k8')
    e = b.e
    for ks in range(3):
        a_reads(e, ks + 1, (ks + 1) & 1)
        a_mfmas(e, ks & 1, vmode, False)
    a_mfmas(e, 1, vmode, False)

G_SEGSTR = 32*8192
VOUT = 91

def a_epi_kqv(b, vmode, sc1):
    ST = ' sc1' if sc1 else ''
    X = 1024 if vmode else 4096
    b.raw(f"""
      v_and_b32 v1, 63, v0
      v_lshrrev_b32 v2, 5, v1
      v_lshlrev_b32 v2, 8, v2
      v_and_b32 v3, 15, v1
      v_lshlrev_b32 v3, 4, v3
      v_bfe_u32 v4, v1, 4, 1
      v_mul_u32_u24 v4, {X}, v4
      v_add3_u32 v{VOUT}, v2, v3, v4
    """)
    for jt in range(4):
        b.begin(f'epi{jt}')
        e = b.e
        e(f's_add_u32 s{G_T0}, s{G_T2}, {jt * G_SEGSTR}')
        for jf in range(4):
            acc = 16 * (4*jf + jt)
            base = VT + 16 * (jf & 1)
            off = jf * (2048 if vmode else 1024)
            for half in range(2):
                t = base + 8 * half
                for q, rq in enumerate((half, half + 2)):
                    for i in range(4):
                        e(f'v_accvgpr_read_b32 v{t + 4*q + i}, a{acc + 4*rq + i}')
                d = base + 8 * half
                e(f'v_cvt_pk_bf16_f32 v{d}, v{t}, v{t+1}')
                e(f'v_cvt_pk_bf16_f32 v{d+1}, v{t+2}, v{t+3}')
                e(f'v_cvt_pk_bf16_f32 v{d+2}, v{t+4}, v{t+5}')
                e(f'v_cvt_pk_bf16_f32 v{d+3}, v{t+6}, v{t+7}')
                o = off + 512 * half
                if o < 4096:
                    e(f'buffer_store_dwordx4 {R(d)}, v{VOUT}, s[{G_OSRD}:{G_OSRD+3}], s{G_T0} offen offset:{o}{ST}')
                else:
                    e(f's_add_u32 s{G_T1}, s{G_T0}, {o & ~4095}')
                    e(f'buffer_store_dwordx4 {R(d)}, v{VOUT}, s[{G_OSRD}:{G_OSRD+3}], s{G_T1} offen offset:{o & 4095}{ST}')

def a_epi_h(b, sc1):
    ST = ' sc1' if sc1 else ''
    b.raw(f"""
      v_and_b32 v1, 63, v0
      v_lshrrev_b32 v2, 5, v1
      v_lshlrev_b32 v2, 9, v2
      v_and_b32 v3, 31, v1
      v_lshlrev_b32 v3, 4, v3
      v_add_u32 v{VOUT}, v2, v3
      s_mov_b32 s{G_T3}, 0xbfb8aa3b
    """)
    for jt in range(4):
        for j in range(2):
            b.begin(f'epih{jt}{j}')
            e = b.e
            e(f's_add_u32 s{G_T0}, s{G_T2}, {(jt * 144 + j) * 2048}')
            ag = 16 * (4*j + jt); au = 16 * (4*(j+2) + jt)
            for half in range(2):
                t = VT + 24 * half
                regs = [4*rq + i for rq in (half, half + 2) for i in range(4)]
                for k, r in enumerate(regs):
                    e(f'v_accvgpr_read_b32 v{t+k}, a{ag + r}')
                    e(f'v_accvgpr_read_b32 v{t+8+k}, a{au + r}')
                    e(f'v_mul_f32 v{t+16+k}, s{G_T3}, v{t+k}')
                    e(f'v_exp_f32 v{t+16+k}, v{t+16+k}')
                    e(f'v_add_f32 v{t+16+k}, 1.0, v{t+16+k}')
                    e(f'v_rcp_f32 v{t+16+k}, v{t+16+k}')
                    e(f'v_mul_f32 v{t+k}, v{t+k}, v{t+8+k}')
                    e(f'v_mul_f32 v{t+k}, v{t+k}, v{t+16+k}')
                for q in range(4):
                    e(f'v_cvt_pk_bf16_f32 v{t+8+q}, v{t+2*q}, v{t+2*q+1}')
                e(f'buffer_store_dwordx4 {R(t+8)}, v{VOUT}, s[{G_OSRD}:{G_OSRD+3}], s{G_T0} offen offset:{1024*half}{ST}')

BXF = [[16 + 8*s + 4*j for j in range(2)] for s in range(2)]
BWF = [32, 36]
BVXA = [40, 41, 42, 43]; BVWA = 44
BVDX = [45, 46]; BVDW = 47
B_STG = 24576
G_DSTG = 32
G_RDD = 38
G_RSTG = 39
LDWB = 1152

def b_setup(b):
    b.raw(f"""
      v_and_b32 v1, 63, v0
      v_and_b32 v2, 31, v1
      v_lshrrev_b32 v3, 5, v1
      s_lshr_b32 s{G_T0}, s{G_W}, 1
      s_lshl_b32 s{G_T0}, s{G_T0}, 13        ; 64*128*wm
      v_lshlrev_b32 v4, 7, v2
      v_add_u32 v4, s{G_T0}, v4
      v_lshrrev_b32 v5, 1, v2
      v_and_b32 v5, 7, v5
      v_xor_b32 v5, v5, v3
      v_lshlrev_b32 v5, 4, v5
      v_add_u32 v{BVXA[0]}, v4, v5
      v_xor_b32 v{BVXA[1]}, 32, v{BVXA[0]}
      v_xor_b32 v{BVXA[2]}, 64, v{BVXA[0]}
      v_xor_b32 v{BVXA[3]}, 96, v{BVXA[0]}
      v_lshrrev_b32 v2, 4, v1
      v_and_b32 v3, 15, v1
      v_lshrrev_b32 v4, 2, v3
      v_and_b32 v5, 3, v3
      v_lshrrev_b32 v6, 1, v2
      v_lshlrev_b32 v6, 3, v6
      v_add_u32 v6, v6, v4
      v_lshlrev_b32 v6, 7, v6
      v_and_b32 v7, 1, v2
      v_lshlrev_b32 v7, 1, v7
      v_lshrrev_b32 v8, 1, v5
      v_add_u32 v7, v7, v8
      s_and_b32 s{G_T0}, s{G_W}, 1
      s_lshl_b32 s{G_T0}, s{G_T0}, 2
      v_add_u32 v7, s{G_T0}, v7
      v_lshrrev_b32 v8, 1, v4
      v_lshlrev_b32 v8, 2, v8
      v_xor_b32 v7, v7, v8
      v_lshlrev_b32 v7, 4, v7
      v_and_b32 v8, 1, v5
      v_lshlrev_b32 v8, 3, v8
      v_add3_u32 v6, v6, v7, v8
      v_add_u32 v{BVWA}, 16384, v6
      v_and_b32 v5, 7, v1
      v_lshrrev_b32 v6, 4, v1
      v_xor_b32 v5, v5, v6
      v_lshrrev_b32 v4, 3, v1
      v_lshlrev_b32 v4, 4, v4
      v_lshlrev_b32 v7, 9, v5
      v_add_u32 v{BVDX[0]}, v4, v7
      v_xor_b32 v5, 4, v5
      v_lshlrev_b32 v7, 9, v5
      v_add_u32 v{BVDX[1]}, v4, v7
      v_lshrrev_b32 v4, 3, v1
      v_lshrrev_b32 v5, 2, v4
      v_lshlrev_b32 v5, 4, v5
      v_and_b32 v6, 3, v4
      v_add_u32 v5, v5, v6
      v_mul_u32_u24 v5, {LDWB}, v5
      v_bfe_u32 v6, v4, 1, 1
      v_lshlrev_b32 v6, 2, v6
      v_and_b32 v7, 7, v1
      v_xor_b32 v6, v6, v7
      v_lshlrev_b32 v6, 4, v6
      v_add_u32 v{BVDW}, v5, v6
    """)

def b_dma(f, **kw):
    f(f's_add_u32 m0, s{G_M0}, s{G_DSTG}', **kw)
    f(f's_mov_b32 s{G_T0}, s{G_XOFF}', **kw)
    for i in range(4):
        f(f'buffer_load_dwordx4 v{BVDX[i & 1]}, s[{G_XSRD}:{G_XSRD+3}], s{G_T0} offen lds', **kw)
        if i < 3:
            f(f's_add_u32 m0, m0, 1024', **kw)
            f(f's_add_u32 s{G_T0}, s{G_T0}, 128', **kw)
    f(f's_add_u32 m0, s{G_M0W}, s{G_DSTG}', **kw)
    f(f'buffer_load_dwordx4 v{BVDW}, s[{G_WSRD}:{G_WSRD+3}], s{G_WOFF} offen lds', **kw)
    f(f's_add_u32 m0, m0, 1024', **kw)
    f(f's_add_u32 s{G_T0}, s{G_WOFF}, {4*LDWB}', **kw)
    f(f'buffer_load_dwordx4 v{BVDW}, s[{G_WSRD}:{G_WSRD+3}], s{G_T0} offen lds', **kw)
    f(f's_add_u32 s{G_XOFF}, s{G_XOFF}, 4096', **kw)
    f(f's_add_u32 s{G_WOFF}, s{G_WOFF}, {64*LDWB}', **kw)
    f(f's_add_u32 s{G_DSTG}, s{G_DSTG}, {B_STG}', **kw)
    f(f's_cmp_eq_u32 s{G_DSTG}, {4*B_STG}', **kw)
    f(f's_cselect_b32 s{G_DSTG}, 0, s{G_DSTG}', **kw)

def b_reads(f, ks, st, **kw):
    for j in range(2):
        f(f'ds_read_b128 {R(BXF[st][j])}, v{BVXA[ks]} offset:{j*4096}', **kw)
    for u in range(2):
        f(f'ds_read_b64_tr_b16 {R(BWF[st]+2*u, 2)}, v{BVWA} offset:{ks*2048 + u*512}', **kw)

def b_mfmas(f, st, first, **kw):
    for j in range(2):
        acc = A(16*j)
        f(f'v_mfma_f32_32x32x16_bf16 {acc}, {R(BWF[st])}, {R(BXF[st][j])}, ' + ('0' if first else acc), **kw)

def b_step(b, first, dma, name, wait=6):
    b.begin(name + 'a')
    e = b.e
    for ks in range(3):
        b_reads(e, ks + 1, (ks + 1) & 1)
        b_mfmas(e, ks & 1, first and ks == 0)
    b.raw(f's_waitcnt vmcnt({wait}) lgkmcnt(0)\ns_barrier')
    b.begin(name + 'b')
    e(f's_add_u32 s{G_RSTG}, s{G_RSTG}, {B_STG}')
    e(f's_cmp_eq_u32 s{G_RSTG}, {4*B_STG}')
    e(f's_cselect_b32 s{G_RSTG}, 0, s{G_RSTG}')
    e(f's_mov_b32 s{G_RDD}, {B_STG}')
    e(f's_cselect_b32 s{G_RDD}, {-3*B_STG & 0xffffffff:#x}, s{G_RDD}')
    for r in BVXA + [BVWA]: e(f'v_add_u32 v{r}, s{G_RDD}, v{r}', prio=600)
    b_reads(e, 0, 0, prio=500)
    if dma: b_dma(e)
    b_mfmas(e, 1, False)

def b_mainloop(b, nsteps_sreg, tag):
    b.raw(f's_mov_b32 s{G_DSTG}, 0\ns_mov_b32 s{G_RSTG}, 0')
    for _ in range(3): b_dma(b.raw)
    b.raw('s_waitcnt vmcnt(12)\ns_barrier')
    b_reads(b.raw, 0, 0)
    b_step(b, True, True, 'b0')
    b.raw(f's_sub_u32 s{G_K}, s{nsteps_sreg}, 4\nL_kb{tag}:')
    b_step(b, False, True, 'bl')
    b.raw(f's_sub_u32 s{G_K}, s{G_K}, 1\ns_cmp_lg_u32 s{G_K}, 0\ns_cbranch_scc1 L_kb{tag}')
    b_step(b, False, False, 'bm', wait=6)
    b_step(b, False, False, 'bn', wait=0)
    b.begin('bz')
    e = b.e
    for ks in range(3):
        b_reads(e, ks + 1, (ks + 1) & 1)
        b_mfmas(e, ks & 1, False)
    b_mfmas(e, 1, False)
```

```python
from worker import *
from attn import *

def load_ptrs(b):
    b.raw(f"""
  s_load_dwordx2 s[{P_AX}:{P_AX+1}], s[0:1], 0
  s_load_dwordx2 s[{P_WQ}:{P_WQ+1}], s[0:1], 16
  s_load_dwordx2 s[{P_WK}:{P_WK+1}], s[0:1], 24
  s_load_dwordx2 s[{P_WV}:{P_WV+1}], s[0:1], 32
  s_load_dwordx2 s[{P_WO}:{P_WO+1}], s[0:1], 40
  s_load_dwordx2 s[{P_BX}:{P_BX+1}], s[0:1], 56
  s_load_dwordx2 s[{P_WG}:{P_WG+1}], s[0:1], 64
  s_load_dwordx2 s[{P_WU}:{P_WU+1}], s[0:1], 72
  s_load_dwordx2 s[{P_WD}:{P_WD+1}], s[0:1], 80
  s_load_dwordx2 s[{P_GW}:{P_GW+1}], s[0:1], 88
  s_load_dwordx2 s[{P_OUT}:{P_OUT+1}], s[0:1], 96
  s_load_dwordx2 s[{G_OSRD}:{G_OSRD+1}], s[0:1], 112
  v_lshrrev_b32 v1, 6, v0
  s_nop 0
  v_readfirstlane_b32 s{G_W}, v1
  s_waitcnt lgkmcnt(0)
  s_mov_b32 s{G_OSRD+2}, 0x10000000
  s_mov_b32 s{G_OSRD+3}, 0x00020000
    """)

def k_attn():
    b = Block()
    b.raw("""
  s_cmp_ge_u32 s2, 520
  s_cbranch_scc1 L_attn_exit
    """)
    load_ptrs(b)
    b.raw(f"""
  s_cmp_ge_u32 s2, 512
  s_cbranch_scc1 L_attn_gate
  s_lshl_b32 s62, s2, 2
  s_add_u32 s62, s62, s{G_W}
  s_lshr_b32 s80, s62, 5
  s_and_b32 s81, s62, 31
    """)
    gen_attn_unit(b, 80, 81)
    b.raw(f"""
  s_branch L_attn_exit
L_attn_gate:
  s_sub_u32 s80, s2, 512
    """)
    gen_gate_job(b, 80)
    b.raw("L_attn_exit:\n  s_endpgm")
    return b.finish()

def k_oproj(kind='oproj', name='oproj'):
    b = Block()
    b.raw(f"""
  s_cmp_ge_u32 s2, 144
  s_cbranch_scc1 L_{name}_exit
    """)
    load_ptrs(b)
    b.raw("s_mov_b32 s80, s2")
    gen_coreB_job(b, kind, 80, tag=name)
    b.raw(f"L_{name}_exit:\n  s_endpgm")
    return b.finish()

def kernel_text(name, lin):
    return f""".globl {name}
.p2align 8
.type {name},@function
{name}:
""" + text(lin)

def desc(name, vgpr, accum):
    return f""".p2align 6
.amdhsa_kernel {name}
  .amdhsa_next_free_vgpr {vgpr}
  .amdhsa_next_free_sgpr 102
  .amdhsa_accum_offset {accum}
  .amdhsa_group_segment_fixed_size 0
  .amdhsa_kernarg_size 120
  .amdhsa_user_sgpr_count 2
  .amdhsa_user_sgpr_kernarg_segment_ptr 1
  .amdhsa_system_sgpr_workgroup_id_x 1
.end_amdhsa_kernel
"""
if __name__ == '__main__':
    o = """; @launch kernel=down_kernel grid=(144,1,1) block=(256,1,1) lds=98304
; @launch kernel=attn_kernel grid=(520,1,1) block=(256,1,1) lds=0
; @launch kernel=oproj_kernel grid=(144,1,1) block=(256,1,1) lds=98304
.amdgcn_target "amdgcn-amd-amdhsa--gfx950"
.text
"""
    o += kernel_text('down_kernel', k_oproj('down', 'down'))
    o += kernel_text('attn_kernel', k_attn())
    o += kernel_text('oproj_kernel', k_oproj('oproj', 'oproj'))
    o += '.section .rodata,"a"\n' + desc('down_kernel', 160, 128) + desc('attn_kernel', 256, 256) + desc('oproj_kernel', 160, 128)
    open('tail_t.s', 'w').write(o)
```

```python
import numpy as np
NSEG=64; H=32; DH=128; DM=576; M=8; SEG=32

def mem_d(c, ga, half, s):
    if c == 8: return 512 + 16*(s >> 1) + 4*ga + 2*half + (s & 1)
    return 64*c + 16*(s & 3) + 4*ga + 2*half + (s >> 2)
def qkv_d_of_k(c, k):
    ga = k >> 4; q = (k >> 2) & 3; half = (k >> 1) & 1; b = k & 1
    return mem_d(c, ga, half, 2*q + b)
def wo_e_of_k(c2, k):
    ga = k >> 4; q = (k >> 2) & 3; half = (k >> 1) & 1; b = k & 1
    return 64*c2 + 16*ga + 8*half + 2*q + b
def bslot_k(gb, j):
    return 32*(j >> 3) + 8*gb + (j & 7)

def wo_tile(w, i):
    return 8*w + i if i < 8 else 32 + w

DELTA = [0, 4, 1, 5, 2, 6, 3, 7]
def qk_chunk(w, p):
    if p == 8: return 8
    d = DELTA[p]
    return (d & 4) | ((d & 3) ^ w)

def operand_list():
    ops = []
    for c in range(9):
        for name in ('q0', 'q1', 'k0', 'k1'):
            ops.append((name, c))
    for c in range(9):
        for name in ('v0', 'v1'):
            ops.append((name, c))
    for i in range(9):
        for c2 in range(2):
            ops.append(('o%d' % i, c2))
    return ops

def to_bf16_bits(x):
    x = np.ascontiguousarray(x, dtype=np.float32)
    u = x.view(np.uint32)
    r = (u + 0x7FFF + ((u >> 16) & 1)) >> 16
    return r.astype(np.uint16)
def bf16_to_f32(b):
    return (b.astype(np.uint32) << 16).view(np.float32)
def rbf(x):
    return bf16_to_f32(to_bf16_bits(x))

def weights_image(Wq, Wk, Wv, Wo):
    img = np.zeros((H, 4, 72, 2, 64, 8), np.uint16)
    lane = np.arange(64); gb = lane >> 4; n = lane & 15
    ops = operand_list()
    for oi, (name, c) in enumerate(ops):
        for j in range(16):
            k = bslot_k(gb, j)
            if name[0] in 'qkv':
                W = {'q': Wq, 'k': Wk, 'v': Wv}[name[0]]
                t = int(name[1])
                for w in range(4):
                    cc = qk_chunk(w, c) if name[0] in 'qk' else c
                    d = np.array([qkv_d_of_k(cc, int(kk)) for kk in k])
                    e = 32*w + 16*t + n
                    img[:, w, oi, j >> 3, :, j & 7] = W[d, :, e].T
            else:
                i = int(name[1:])
                e = np.array([wo_e_of_k(c, int(kk)) for kk in k])
                for w in range(4):
                    dcol = 16*wo_tile(w, i) + n
                    img[:, w, oi, j >> 3, :, j & 7] = Wo[:, e, dcol]
    return img

def mem_image(mem):
    img = np.zeros((9, 64, 8), np.uint16)
    for c in range(9):
        for L in range(64):
            ga = L >> 4; m = L & 15; r = m >> 1; half = m & 1
            for s in range(8):
                img[c, L, s] = mem[r, mem_d(c, ga, half, s)]
    return img
def mem_from_image(img):
    mem = np.zeros((8, 576), img.dtype)
    for c in range(9):
        for L in range(64):
            ga = L >> 4; m = L & 15; r = m >> 1; half = m & 1
            for s in range(8):
                mem[r, mem_d(c, ga, half, s)] = img[c, L, s]
    return mem

def kx_image(Kx):
    K = Kx.reshape(NSEG, 2, 16, H, 4, 2, 4, 4)
    return np.ascontiguousarray(K.transpose(0, 3, 1, 4, 6, 2, 5, 7)).reshape(NSEG, H, 2, 4, 64, 8)
def vx_image(Vx):
    V = Vx.reshape(NSEG, 2, 4, 4, H, 8, 16)
    return np.ascontiguousarray(V.transpose(0, 4, 5, 2, 6, 1, 3)).reshape(NSEG, H, 8, 64, 8)

def km_from_pub(km):
    out = np.zeros((km.shape[0], H, 8, 128), np.uint16)
    for L in range(64):
        g = L >> 4; n = L & 15; c = n >> 2; p = n & 3
        if p < 2:
            for kap in range(4):
                for j in range(8):
                    out[:, :, 2*c + p, 32*kap + 16*(j >> 2) + 4*g + (j & 3)] = km[:, :, kap, L, j]
    return out
def qm_from_pub(km):
    out = np.zeros((km.shape[0], H, 8, 128), np.uint16)
    for L in range(64):
        g = L >> 4; n = L & 15; c = n >> 2; p = n & 3
        if p >= 2:
            for kap in range(4):
                for j in range(8):
                    out[:, :, 2*c + p - 2, 32*kap + 16*(j >> 2) + 4*g + (j & 3)] = km[:, :, kap, L, j]
    return out
def vm_from_pub(vm):
    f = bf16_to_f32(vm)
    out = np.zeros((vm.shape[0], H, 8, 128), np.float32)
    for L in range(64):
        g = L >> 4; n = L & 15
        for w in range(4):
            for t in range(2):
                e = 32*w + 16*t + n
                out[:, :, 2*g, e] = f[:, :, w, L, 4*t + 0] + f[:, :, w, L, 4*t + 1]
                out[:, :, 2*g + 1, e] = f[:, :, w, L, 4*t + 2] + f[:, :, w, L, 4*t + 3]
    return out

WS_INBOX = 0
INBOX_SLOT = 0x80000
WS_IMG = 0xD0000
WS_KX = 0x100000
WS_VX = WS_KX + 0x1000000
WS_KM = WS_VX + 0x1000000
WS_VM = WS_KM + 0x800000
WS_WIMG = WS_VM + 0x800000
WS_END = WS_WIMG + 32*4*72*2048
WS_QX = WS_WIMG
WS_H = WS_QX + 0x1400000
WS_O = WS_H + 0x1400000
WS_B = WS_O + 0x1000000
WS_G = WS_B + 0x500000
WS_TOTAL = WS_G + 0x10000

def q_image(Q): return kx_image(Q)
def h_image(Hm):
    F = Hm.shape[1]
    Hh = Hm.reshape(64, 32, F // 32, 2, 4, 4)
    return np.ascontiguousarray(Hh.transpose(0, 2, 4, 1, 3, 5)).reshape(64, F // 32, 4, 32, 8)
```

```python
from gemm import *
P_AX, P_WQ, P_WK, P_WV, P_BX, P_WG, P_WU = 40, 42, 44, 46, 48, 50, 52
J_TYPE, J_MB, J_NT, J_HM, J_LDW = 33, 34, 35, 36, 37

def gen_coreA_job(b, job, tag='', decode=True):
    if decode:
        b.raw(f"""
      s_cmp_lt_u32 s{job}, 256
      s_cbranch_scc0 L_j_notkv{tag}
      s_lshr_b32 s{J_MB}, s{job}, 5
      s_and_b32 s{J_NT}, s{job}, 31
      s_mov_b32 s{J_TYPE}, 0
      s_cmp_ge_u32 s{J_NT}, 16
      s_cselect_b32 s{J_TYPE}, 1, 0
      s_and_b32 s{J_NT}, s{J_NT}, 15
      s_branch L_j_dec{tag}
L_j_notkv{tag}:
      s_cmp_lt_u32 s{job}, 384
      s_cbranch_scc0 L_j_h{tag}
      s_sub_u32 s{G_T0}, s{job}, 256
      s_lshr_b32 s{J_MB}, s{G_T0}, 4
      s_and_b32 s{J_NT}, s{G_T0}, 15
      s_mov_b32 s{J_TYPE}, 2
      s_branch L_j_dec{tag}
L_j_h{tag}:
      s_sub_u32 s{G_T0}, s{job}, 384
      s_mul_i32 s{J_MB}, s{G_T0}, 1821
      s_lshr_b32 s{J_MB}, s{J_MB}, 16
      s_mul_i32 s{G_T1}, s{J_MB}, 36
      s_sub_u32 s{J_NT}, s{G_T0}, s{G_T1}
      s_mov_b32 s{J_TYPE}, 3
L_j_dec{tag}:
        """)
    b.raw(f"""
      s_cmp_eq_u32 s{J_TYPE}, 3
      s_cselect_b32 s{J_HM}, 1, 0
      s_mov_b32 s{J_LDW}, 8192
      s_cselect_b32 s{J_LDW}, 9216, s{J_LDW}
      ; X srd
      s_mov_b32 s{G_XSRD}, s{P_AX}
      s_mov_b32 s{G_XSRD+1}, s{P_AX+1}
      s_mov_b32 s{G_XSRD+2}, {2048*1152}
      s_mov_b32 s{G_XSRD+3}, 0x00020000
      s_mov_b32 s{G_WSRD}, s{P_WK}
      s_mov_b32 s{G_WSRD+1}, s{P_WK+1}
      s_cmp_eq_u32 s{J_TYPE}, 1
      s_cselect_b32 s{G_WSRD}, s{P_WV}, s{G_WSRD}
      s_cselect_b32 s{G_WSRD+1}, s{P_WV+1}, s{G_WSRD+1}
      s_cmp_eq_u32 s{J_TYPE}, 2
      s_cselect_b32 s{G_WSRD}, s{P_WQ}, s{G_WSRD}
      s_cselect_b32 s{G_WSRD+1}, s{P_WQ+1}, s{G_WSRD+1}
      s_mov_b32 s{G_WSRD+2}, {576*8192}
      s_cmp_eq_u32 s{J_TYPE}, 3
      s_cbranch_scc0 L_j_nh{tag}
      s_cmp_lt_u32 s{G_W}, 2
      s_cselect_b32 s{G_WSRD}, s{P_WG}, s{P_WU}
      s_cselect_b32 s{G_WSRD+1}, s{P_WG+1}, s{P_WU+1}
      s_mov_b32 s{G_WSRD+2}, {576*9216}
L_j_nh{tag}:
      s_mov_b32 s{G_WSRD+3}, 0x00020000
      s_lshl_b32 s{G_T0}, s{J_MB}, 8
      s_lshl_b32 s{G_T1}, s{G_W}, 6
      s_add_u32 s{G_T0}, s{G_T0}, s{G_T1}
      s_mul_i32 s{G_XOFF}, s{G_T0}, {LDX}
      s_lshl_b32 s{G_M0}, s{G_W}, 13
      s_lshr_b32 s{G_T0}, s{G_W}, 1
      s_and_b32 s{G_T1}, s{G_W}, 1
      s_mul_i32 s{G_WOFF}, s{G_T1}, s{J_LDW}
      s_lshl_b32 s{G_WOFF}, s{G_WOFF}, 5
      s_lshl_b32 s{G_T2}, s{J_NT}, 9
      s_lshl_b32 s{G_T3}, s{G_T0}, 8
      s_add_u32 s{G_T2}, s{G_T2}, s{G_T3}
      s_lshl_b32 s{G_T3}, s{J_NT}, 8            ; 128nt*2
      s_cmp_eq_u32 s{J_HM}, 1
      s_cselect_b32 s{G_T2}, s{G_T3}, s{G_T2}
      s_add_u32 s{G_WOFF}, s{G_WOFF}, s{G_T2}
      s_lshl_b32 s{G_M0W}, s{G_T0}, 14
      s_lshl_b32 s{G_T1}, s{G_T1}, 13
      s_add_u32 s{G_M0W}, s{G_M0W}, s{G_T1}
      s_add_u32 s{G_M0W}, s{G_M0W}, 32768
      s_lshl_b32 s{G_LDW4}, s{J_LDW}, 2
      s_lshl_b32 s{G_WSTEP}, s{J_LDW}, 6
    """)
    a_setup_w(b, J_HM, J_LDW)
    b.raw(f"""
      s_cmp_eq_u32 s{J_TYPE}, 1
      s_cbranch_scc1 L_j_v{tag}
    """)
    a_mainloop(b, False, 'n' + tag)
    b.raw(f"""
      s_cmp_eq_u32 s{J_TYPE}, 3
      s_cbranch_scc1 L_j_eh{tag}
      s_lshr_b32 s{G_T0}, s{G_W}, 1
      s_lshl_b32 s{G_T0}, s{G_T0}, 2
      s_lshl_b32 s{G_T1}, s{J_MB}, 3
      s_add_u32 s{G_T0}, s{G_T0}, s{G_T1}
      s_mul_i32 s{G_T2}, s{G_T0}, {G_SEGSTR}
      s_and_b32 s{G_T0}, s{G_W}, 1
      s_lshl_b32 s{G_T1}, s{J_NT}, 1
      s_add_u32 s{G_T0}, s{G_T0}, s{G_T1}
      s_lshl_b32 s{G_T0}, s{G_T0}, 13
      s_add_u32 s{G_T2}, s{G_T2}, s{G_T0}
      s_cmp_eq_u32 s{J_TYPE}, 0
      s_mov_b32 s{G_T0}, {WS_QX}
      s_cselect_b32 s{G_T0}, {WS_KX}, s{G_T0}
      s_add_u32 s{G_T2}, s{G_T2}, s{G_T0}
    """)
    a_epi_kqv(b, False, True)
    b.raw(f"""
      s_branch L_j_done{tag}
L_j_eh{tag}:
      s_lshr_b32 s{G_T0}, s{G_W}, 1
      s_lshl_b32 s{G_T0}, s{G_T0}, 2
      s_lshl_b32 s{G_T1}, s{J_MB}, 3
      s_add_u32 s{G_T0}, s{G_T0}, s{G_T1}
      s_mul_i32 s{G_T0}, s{G_T0}, 144
      s_and_b32 s{G_T1}, s{G_W}, 1
      s_lshl_b32 s{G_T1}, s{G_T1}, 1
      s_lshl_b32 s{G_T2}, s{J_NT}, 2
      s_add_u32 s{G_T0}, s{G_T0}, s{G_T1}
      s_add_u32 s{G_T0}, s{G_T0}, s{G_T2}
      s_lshl_b32 s{G_T2}, s{G_T0}, 11
      s_add_u32 s{G_T2}, s{G_T2}, {WS_H}
    """)
    a_epi_h(b, True)
    b.raw(f"""
      s_branch L_j_done{tag}
L_j_v{tag}:
    """)
    a_mainloop(b, True, 'v' + tag)
    b.raw(f"""
      s_lshr_b32 s{G_T0}, s{G_W}, 1
      s_lshl_b32 s{G_T0}, s{G_T0}, 2
      s_lshl_b32 s{G_T1}, s{J_MB}, 3
      s_add_u32 s{G_T0}, s{G_T0}, s{G_T1}
      s_mul_i32 s{G_T2}, s{G_T0}, {G_SEGSTR}
      s_and_b32 s{G_T0}, s{G_W}, 1
      s_lshl_b32 s{G_T1}, s{J_NT}, 1
      s_add_u32 s{G_T0}, s{G_T0}, s{G_T1}
      s_lshl_b32 s{G_T0}, s{G_T0}, 13
      s_add_u32 s{G_T2}, s{G_T2}, s{G_T0}
      s_add_u32 s{G_T2}, s{G_T2}, {WS_VX}
    """)
    a_epi_kqv(b, True, True)
    b.raw(f"""
L_j_done{tag}:
      s_waitcnt vmcnt(0)
    """)

P_WD, P_WO, P_GW, P_OUT = 54, 56, 58, 60
def gen_coreB_job(b, kind, job, tag=''):
    NF = 144 if kind == 'down' else 128
    XB = WS_H if kind == 'down' else WS_O
    PW = P_WD if kind == 'down' else P_WO
    KROWS = 4608 if kind == 'down' else 4096
    b.raw(f"""
      s_mul_i32 s{J_MB}, s{job}, 7282
      s_lshr_b32 s{J_MB}, s{J_MB}, 16
      s_mul_i32 s{G_T0}, s{J_MB}, 9
      s_sub_u32 s{J_NT}, s{job}, s{G_T0}
      s_mov_b32 s{G_XSRD}, s{G_OSRD}
      s_mov_b32 s{G_XSRD+1}, s{G_OSRD+1}
      s_mov_b32 s{G_XSRD+2}, 0x10000000
      s_mov_b32 s{G_XSRD+3}, 0x00020000
      s_mov_b32 s{G_WSRD}, s{PW}
      s_mov_b32 s{G_WSRD+1}, s{PW+1}
      s_mov_b32 s{G_WSRD+2}, {KROWS*1152}
      s_mov_b32 s{G_WSRD+3}, 0x00020000
      s_lshl_b32 s{G_T0}, s{J_MB}, 2
      s_add_u32 s{G_T0}, s{G_T0}, s{G_W}
      s_mul_i32 s{G_XOFF}, s{G_T0}, {NF*2048}
      s_add_u32 s{G_XOFF}, s{G_XOFF}, {XB}
      s_lshl_b32 s{G_M0}, s{G_W}, 12
      s_lshr_b32 s{G_T0}, s{G_W}, 1
      s_lshl_b32 s{G_T0}, s{G_T0}, 5
      s_and_b32 s{G_T1}, s{G_W}, 1
      s_lshl_b32 s{G_T1}, s{G_T1}, 3
      s_add_u32 s{G_T0}, s{G_T0}, s{G_T1}
      s_mul_i32 s{G_WOFF}, s{G_T0}, {LDWB}
      s_lshl_b32 s{G_T0}, s{J_NT}, 7
      s_add_u32 s{G_WOFF}, s{G_WOFF}, s{G_T0}
      s_lshl_b32 s{G_M0W}, s{G_W}, 11
      s_add_u32 s{G_M0W}, s{G_M0W}, 16384
      s_mov_b32 s{J_LDW}, {KROWS // 64}
    """)
    b_setup(b)
    b_mainloop(b, J_LDW, tag)
    b.raw(f"""
      s_lshl_b32 s{G_T2}, s{job}, 15
      s_lshl_b32 s{G_T0}, s{G_W}, 13
      s_add_u32 s{G_T2}, s{G_T2}, s{G_T0}
      s_add_u32 s{G_T2}, s{G_T2}, {WS_B}
      v_and_b32 v1, 63, v0
      v_lshlrev_b32 v2, 4, v1
      s_add_u32 s{G_T3}, s{G_T2}, 4096
    """)
    if kind == 'down':
        b.raw('s_nop 15')
        for q in range(8):
            so = G_T2 if q < 4 else G_T3
            b.raw(f'buffer_store_dwordx4 a[{4*q}:{4*q+3}], v2, s[{G_OSRD}:{G_OSRD+3}], s{so} offen offset:{(q & 3)*1024} sc1')
    else:
        b.begin('oepi')
        e = b.e
        BV = 48
        for q in range(8):
            so = G_T2 if q < 4 else G_T3
            e(f'buffer_load_dwordx4 {R(BV+4*q)}, v2, s[{G_OSRD}:{G_OSRD+3}], s{so} offen offset:{(q & 3)*1024}')
        e(f's_lshl_b32 s{G_T0}, s{J_MB}, 7')
        e(f's_lshr_b32 s{G_T1}, s{G_W}, 1')
        e(f's_lshl_b32 s{G_T1}, s{G_T1}, 6')
        e(f's_add_u32 s{G_T0}, s{G_T0}, s{G_T1}')
        e(f's_lshl_b32 s{G_T1}, s{G_T0}, 2')
        e(f's_add_u32 s{G_T1}, s{G_T1}, {WS_G}')
        e(f'v_and_b32 v3, 31, v1')
        e(f'v_lshlrev_b32 v4, 2, v3')
        e(f'buffer_load_dword v80, v4, s[{G_OSRD}:{G_OSRD+3}], s{G_T1} offen')
        e(f'buffer_load_dword v81, v4, s[{G_OSRD}:{G_OSRD+3}], s{G_T1} offen offset:128')
        e(f's_mov_b32 s{G_XSRD}, s{P_OUT}')
        e(f's_mov_b32 s{G_XSRD+1}, s{P_OUT+1}')
        e(f's_mov_b32 s{G_XSRD+2}, {2048*1152}')
        e(f'v_mul_u32_u24 v5, 1152, v3')
        e(f'v_lshrrev_b32 v6, 5, v1')
        e(f'v_lshlrev_b32 v6, 4, v6')
        e(f'v_add_u32 v5, v5, v6')
        e(f's_mul_i32 s{G_T0}, s{G_T0}, 1152')
        e(f's_lshl_b32 s{G_T1}, s{J_NT}, 7')
        e(f's_add_u32 s{G_T0}, s{G_T0}, s{G_T1}')
        e(f's_and_b32 s{G_T1}, s{G_W}, 1')
        e(f's_lshl_b32 s{G_T1}, s{G_T1}, 6')
        e(f's_add_u32 s{G_T0}, s{G_T0}, s{G_T1}')
        e(f's_add_u32 s{G_T1}, s{G_T0}, {32*1152}')
        for jt in range(2):
            g = 80 + jt
            T = 84 + 16*jt
            for r in range(16):
                e(f'v_accvgpr_read_b32 v{T+r}, a{16*jt + r}')
                e(f'v_sub_f32 v{T+r}, v{T+r}, v{BV + 16*jt + r}')
                e(f'v_fma_f32 v{T+r}, v{T+r}, v{g}, v{BV + 16*jt + r}')
            for rq in range(4):
                e(f'v_cvt_pk_bf16_f32 v{T+2*rq}, v{T+4*rq}, v{T+4*rq+1}')
                e(f'v_cvt_pk_bf16_f32 v{T+2*rq+1}, v{T+4*rq+2}, v{T+4*rq+3}')
            for m in range(2):
                e(f'v_permlane32_swap_b32 v{T+4*m}, v{T+4*m+2}')
                e(f'v_permlane32_swap_b32 v{T+4*m+1}, v{T+4*m+3}')
                so = G_T0 if jt == 0 else G_T1
                e(f'buffer_store_dwordx4 {R(T+4*m)}, v5, s[{G_XSRD}:{G_XSRD+3}], s{so} offen offset:{32*m}')
    b.raw('s_waitcnt vmcnt(0)')

def gen_gate_job(b, job, tag=''):
    b.raw(f"""
      s_mov_b32 s{G_XSRD}, s{P_AX}
      s_mov_b32 s{G_XSRD+1}, s{P_AX+1}
      s_mov_b32 s{G_XSRD+2}, {2048*1152}
      s_mov_b32 s{G_XSRD+3}, 0x00020000
      s_lshl_b32 s{G_T0}, s{job}, 8
      v_add_u32 v2, s{G_T0}, v0              ; token
      v_mul_u32_u24 v3, 1152, v2
      v_mov_b32 v4, 0
      s_mov_b32 s{G_K}, 0
L_gate{tag}:
      s_lshl_b32 s{G_T1}, s{G_K}, 6
      s_add_u32 s62, s{P_GW}, s{G_T1}
      s_addc_u32 s63, s{P_GW+1}, 0
      s_load_dwordx16 s[64:79], s[62:63], 0
      buffer_load_dwordx4 v[8:11], v3, s[{G_XSRD}:{G_XSRD+3}], s{G_T1} offen
      buffer_load_dwordx4 v[12:15], v3, s[{G_XSRD}:{G_XSRD+3}], s{G_T1} offen offset:16
      buffer_load_dwordx4 v[16:19], v3, s[{G_XSRD}:{G_XSRD+3}], s{G_T1} offen offset:32
      buffer_load_dwordx4 v[20:23], v3, s[{G_XSRD}:{G_XSRD+3}], s{G_T1} offen offset:48
      s_waitcnt vmcnt(0) lgkmcnt(0)
    """)
    for i in range(16): b.raw(f'v_dot2c_f32_bf16 v4, s{64+i}, v{8+i}')
    b.raw(f"""
      s_add_u32 s{G_K}, s{G_K}, 1
      s_cmp_lt_u32 s{G_K}, 18
      s_cbranch_scc1 L_gate{tag}
      v_mul_f32 v4, 0xbfb8aa3b, v4
      v_exp_f32 v4, v4
      s_nop 0
      v_add_f32 v4, 1.0, v4
      v_rcp_f32 v4, v4
      v_lshlrev_b32 v2, 2, v2
      s_mov_b32 s{G_T0}, {WS_G}
      s_nop 0
      buffer_store_dword v4, v2, s[{G_OSRD}:{G_OSRD+3}], s{G_T0} offen sc1
      s_waitcnt vmcnt(0)
    """)
```

```python
import sys
import chain as C
import gemm as Gm
from asmgen import *
from layout import *
from worker import *
from kernels import k_attn, k_oproj, kernel_text, desc, load_ptrs
from gemm import G_W, G_T0, G_T1, G_T2, G_T3, G_OSRD

D_TOTAL, D_CHAIN, D_CINIT, D_MIX = 8, 9, 10, 11
D_Q, D_KV, D_H, D_DQ = 16, 24, 32, 40
P_DBG = 62
BC = 0x27000

def one_lane(b, body):
    b.raw(f"s_mov_b64 s[66:67], exec\ns_mov_b64 exec, 1\n{body}\ns_mov_b64 exec, s[66:67]")
def atomic_add_ret(b, off, dst, val=1):
    one_lane(b, f"""
      v_mov_b32 v2, {off}
      v_mov_b32 v3, {val}
      global_atomic_add v4, v2, v3, s[{P_DBG}:{P_DBG+1}] sc0 sc1
      s_waitcnt vmcnt(0)
      v_readfirstlane_b32 s{dst}, v4""")
def load_dbg(b, off, dst):
    b.raw(f"""
      v_mov_b32 v2, {off}
      global_load_dword v4, v2, s[{P_DBG}:{P_DBG+1}] sc1
      s_waitcnt vmcnt(0)
      v_readfirstlane_b32 s{dst}, v4""")
def bcast(b, sreg, lab):
    b.raw(f"""
      v_mov_b32 v2, {BC}
      v_mov_b32 v3, s{sreg}
      ds_write_b32 v2, v3
      s_waitcnt lgkmcnt(0)
{lab}:
      s_barrier
      v_mov_b32 v2, {BC}
      ds_read_b32 v3, v2
      s_waitcnt lgkmcnt(0)
      v_readfirstlane_b32 s{sreg}, v3
      s_nop 3
      s_barrier""")

def gen_roles(b):
    b.raw(f"""
      s_getreg_b32 s68, hwreg(HW_REG_XCC_ID, 0, 4)
      s_and_b32 s68, s68, 7
      s_cmp_lg_u32 s{G_W}, 0
      s_cbranch_scc1 L_role_wait
      s_cmp_eq_u32 s68, 0
      s_cbranch_scc0 L_role_other""")
    atomic_add_ret(b, 4*D_CHAIN, 69)
    atomic_add_ret(b, 4*D_TOTAL, 70)
    b.raw("s_branch L_role_have\nL_role_other:")
    atomic_add_ret(b, 4*D_TOTAL, 70)
    load_dbg(b, 4*D_CHAIN, 69)
    b.raw(f"""
      s_sub_u32 s71, 255, s70
      s_add_u32 s71, s71, s69
      s_mov_b32 s69, 1000
      s_cmp_lt_u32 s71, 32
      s_cbranch_scc0 L_role_have""")
    atomic_add_ret(b, 4*D_CHAIN, 69)
    b.raw("L_role_have:")
    bcast(b, 69, 'L_role_wait')
    b.raw("s_cmp_lt_u32 s69, 32\ns_cbranch_scc1 L_chain")

def gen_worker(b):
    b.raw(f"""
      s_sub_u32 s72, s68, 1
      s_cmp_eq_u32 s68, 0
      s_cselect_b32 s72, 0, s72
      s_mov_b32 s73, 0""")
    Gm.a_setup(b)
    b.raw(f"""
L_wq_next:
      s_cmp_lg_u32 s{G_W}, 0
      s_cbranch_scc1 L_wq_wait
      s_add_u32 s74, s72, {D_Q}
      s_lshl_b32 s74, s74, 2""")
    atomic_add_ret(b, 's74', 75)
    bcast(b, 75, 'L_wq_wait')
    b.raw(f"""
      s_cmp_lt_u32 s75, 96
      s_cbranch_scc1 L_wq_job
      s_add_u32 s72, s72, 1
      s_cmp_eq_u32 s72, 7
      s_cselect_b32 s72, 0, s72
      s_add_u32 s73, s73, 1
      s_cmp_lt_u32 s73, 7
      s_cbranch_scc1 L_wq_next
      s_branch L_wd_start
L_wq_job:
      s_lshr_b32 s76, s75, 5
      s_mul_i32 s76, s76, 7
      s_add_u32 s76, s76, s72           ; group
      s_and_b32 s77, s75, 31            ; r
      s_lshr_b32 s78, s77, 3
      s_and_b32 s79, s77, 7
      s_cmp_lt_u32 s76, 8
      s_cbranch_scc0 L_wq_notkv
      s_lshr_b32 s{G_T0}, s76, 2
      s_lshl_b32 s{G_T0}, s{G_T0}, 2
      s_add_u32 s{J_MB}, s{G_T0}, s78
      s_and_b32 s{G_T0}, s76, 3
      s_lshl_b32 s{G_T0}, s{G_T0}, 3
      s_add_u32 s{J_NT}, s{G_T0}, s79
      s_cmp_ge_u32 s{J_NT}, 16
      s_cselect_b32 s{J_TYPE}, 1, 0
      s_and_b32 s{J_NT}, s{J_NT}, 15
      s_branch L_wq_dec
L_wq_notkv:
      s_cmp_lt_u32 s76, 12
      s_cbranch_scc0 L_wq_h
      s_sub_u32 s{G_T1}, s76, 8
      s_lshr_b32 s{G_T0}, s{G_T1}, 1
      s_lshl_b32 s{G_T0}, s{G_T0}, 2
      s_add_u32 s{J_MB}, s{G_T0}, s78
      s_and_b32 s{G_T0}, s{G_T1}, 1
      s_lshl_b32 s{G_T0}, s{G_T0}, 3
      s_add_u32 s{J_NT}, s{G_T0}, s79
      s_mov_b32 s{J_TYPE}, 2
      s_branch L_wq_dec
L_wq_h:
      s_mov_b32 s{J_TYPE}, 3
      s_cmp_eq_u32 s76, 20
      s_cbranch_scc1 L_wq_h20
      s_sub_u32 s{G_T1}, s76, 12
      s_lshr_b32 s{G_T0}, s{G_T1}, 2
      s_lshl_b32 s{G_T0}, s{G_T0}, 2
      s_add_u32 s{J_MB}, s{G_T0}, s78
      s_and_b32 s{G_T0}, s{G_T1}, 3
      s_lshl_b32 s{G_T0}, s{G_T0}, 3
      s_add_u32 s{J_NT}, s{G_T0}, s79
      s_branch L_wq_dec
L_wq_h20:
      s_lshr_b32 s{J_MB}, s77, 2
      s_and_b32 s{J_NT}, s77, 3
      s_add_u32 s{J_NT}, s{J_NT}, 32
L_wq_dec:""")
    gen_coreA_job(b, None, tag='w', decode=False)
    b.raw(f"""
      s_barrier
      s_cmp_lg_u32 s{G_W}, 0
      s_cbranch_scc1 L_wq_next
      s_cmp_eq_u32 s{J_TYPE}, 2
      s_cbranch_scc1 L_wq_next
      s_mov_b32 s74, {D_KV}
      s_cmp_eq_u32 s{J_TYPE}, 3
      s_cselect_b32 s74, {D_H}, s74
      s_add_u32 s74, s74, s{J_MB}
      s_lshl_b32 s74, s74, 2""")
    one_lane(b, f"""
      v_mov_b32 v2, s74
      v_mov_b32 v3, 1
      global_atomic_add v2, v3, s[{P_DBG}:{P_DBG+1}] sc1
      s_waitcnt vmcnt(0)""")
    b.raw(f"""
      s_branch L_wq_next
L_wd_start:
      s_sub_u32 s72, s68, 1
      s_cmp_eq_u32 s68, 0
      s_cselect_b32 s72, 0, s72
      s_mov_b32 s73, 0
L_wd_next:
      s_cmp_lg_u32 s{G_W}, 0
      s_cbranch_scc1 L_wd_wait
      s_add_u32 s74, s72, {D_DQ}
      s_lshl_b32 s74, s74, 2""")
    atomic_add_ret(b, 's74', 75)
    b.raw(f"""
      s_mul_i32 s76, s75, 7282
      s_lshr_b32 s76, s76, 16           ; k = t/9 (t small)
      s_mul_i32 s77, s76, 7
      s_add_u32 s77, s77, s72           ; block
      s_cmp_lt_u32 s75, 27
      s_cselect_b32 s77, s77, 99
      s_cmp_lt_u32 s77, 16
      s_cbranch_scc1 L_wd_valid
      s_mov_b32 s77, 0xffff
      s_branch L_wd_pub
L_wd_valid:
      s_lshr_b32 s78, s77, 1
      s_add_u32 s78, s78, {D_H}
      s_lshl_b32 s78, s78, 2
      s_mov_b32 s79, 0
L_wd_poll:""")
    load_dbg(b, 's78', 80)
    b.raw(f"""
      s_cmp_ge_u32 s80, 36
      s_cbranch_scc1 L_wd_ready
      s_sleep 16
      s_add_u32 s79, s79, 1
      s_cmp_lt_u32 s79, 400000
      s_cbranch_scc1 L_wd_poll
L_wd_ready:
      s_mul_i32 s78, s76, 9
      s_sub_u32 s78, s75, s78
      s_mul_i32 s77, s77, 9
      s_add_u32 s77, s77, s78
L_wd_pub:""")
    bcast(b, 77, 'L_wd_wait')
    b.raw(f"""
      s_cmp_lt_u32 s77, 144
      s_cbranch_scc1 L_wd_job
      s_add_u32 s72, s72, 1
      s_cmp_eq_u32 s72, 7
      s_cselect_b32 s72, 0, s72
      s_add_u32 s73, s73, 1
      s_cmp_lt_u32 s73, 7
      s_cbranch_scc1 L_wd_next
      s_branch L_main_exit
L_wd_job:""")
    gen_coreB_job(b, 'down', 77, tag='wd')
    b.raw("s_barrier\ns_branch L_wd_next")

def gen_chain_prologue(b):
    S = C
    b.raw(f"""
L_chain:
      s_load_dwordx2 s[74:75], s[0:1], 8          ; mem0
      s_mov_b32 s{S.S_WS}, s{G_OSRD}
      s_mov_b32 s{S.S_WS+1}, s{G_OSRD+1}
      s_mov_b32 s{S.S_WS+2}, 0x4000000
      s_mov_b32 s{S.S_WS+3}, 0x00020000
      s_mov_b32 s76, s{P_WQ}
      s_mov_b32 s77, s{P_WQ+1}
      s_mov_b32 s78, s{P_WK}
      s_mov_b32 s79, s{P_WK+1}
      s_mov_b32 s80, s{P_WV}
      s_mov_b32 s81, s{P_WV+1}
      s_mov_b32 s82, s{P_WO}
      s_mov_b32 s83, s{P_WO+1}
      s_mov_b32 s{S.S_H}, s69
      s_waitcnt lgkmcnt(0)""")
    S.gen_setup(b)
    b.raw(f"s_cmp_lg_u32 s{S.S_W}, 0\ns_cbranch_scc1 L_cp_nomix\ns_lshl_b32 s73, 1, s68")
    one_lane(b, f"""
      v_mov_b32 v20, {4*D_MIX}
      v_mov_b32 v21, s73
      global_atomic_or v20, v21, s[{P_DBG}:{P_DBG+1}] sc1""")
    b.raw("L_cp_nomix:")
    b.raw(f"""
      v_mov_b32 v20, -1
      v_mov_b32 v21, -1
      v_mov_b32 v22, -1
      v_mov_b32 v23, -1
      s_mul_i32 s{S.S_T0}, s{S.S_H}, 9216
      s_add_u32 s{S.S_T0}, s{S.S_T0}, {WS_INBOX}
      s_lshl_b32 s{S.S_T1}, s{S.S_W}, 10
      s_add_u32 s{S.S_T0}, s{S.S_T0}, s{S.S_T1}""")
    for sl in range(2):
        for i in range(3):
            if i < 2:
                b.raw(f"s_add_u32 s{S.S_T2}, s{S.S_T0}, {sl*0x80000 + i*4096}")
            else:
                b.raw(f"s_sub_u32 s{S.S_T2}, s{S.S_T0}, s{S.S_T1}\ns_add_u32 s{S.S_T2}, s{S.S_T2}, {sl*0x80000 + 8192}")
            b.raw(f"buffer_store_dwordx4 v[20:23], v{S.L16}, {S.SRD}, s{S.S_T2} offen sc1")
    b.raw(f"""
      s_cmp_lg_u32 s{S.S_W}, 0
      s_cbranch_scc1 L_cp_img_done
      s_cmp_lt_u32 s{S.S_H}, 9
      s_cbranch_scc1 L_cp_img0
      s_cmp_ge_u32 s{S.S_H}, 27
      s_cbranch_scc1 L_cp_img_done
      s_lshl_b32 s{S.S_T2}, s{S.S_H}, 10
      s_add_u32 s{S.S_T2}, s{S.S_T2}, {WS_IMG}
      buffer_store_dwordx4 v[20:23], v{S.L16}, {S.SRD}, s{S.S_T2} offen sc1
      s_branch L_cp_img_done
L_cp_img0:
      s_mov_b32 s84, s74
      s_mov_b32 s85, s75
      s_mov_b32 s86, 9216
      s_mov_b32 s87, 0x00020000
      v_lshrrev_b32 v24, 1, v13
      v_mul_u32_u24 v24, 1152, v24
      v_lshlrev_b32 v25, 3, v12               ; 4ga*2
      v_and_b32 v26, 1, v13
      v_lshlrev_b32 v26, 2, v26               ; 2half*2
      v_add3_u32 v24, v24, v25, v26
      s_lshl_b32 s{S.S_T2}, s{S.S_H}, 7       ; 64c*2
      s_cmp_eq_u32 s{S.S_H}, 8
      s_cbranch_scc1 L_cp_img8""")
    for s in range(8):
        b.raw(f"buffer_load_ushort v{32 + s}, v24, s[84:87], s{S.S_T2} offen offset:{(16*(s & 3) + (s >> 2))*2}")
    b.raw("s_branch L_cp_img_st\nL_cp_img8:")
    for s in range(8):
        b.raw(f"buffer_load_ushort v{32 + s}, v24, s[84:87], s{S.S_T2} offen offset:{(16*(s >> 1) + (s & 1))*2}")
    b.raw(f"""
L_cp_img_st:
      s_lshl_b32 s{S.S_T2}, s{S.S_H}, 10
      s_add_u32 s{S.S_T2}, s{S.S_T2}, {WS_IMG}
      s_waitcnt vmcnt(0)
      v_lshl_or_b32 v28, v33, 16, v32
      v_lshl_or_b32 v29, v35, 16, v34
      v_lshl_or_b32 v30, v37, 16, v36
      v_lshl_or_b32 v31, v39, 16, v38
      buffer_store_dwordx4 v[28:31], v{S.L16}, {S.SRD}, s{S.S_T2} offen sc1
L_cp_img_done:
      s_waitcnt vmcnt(0)
      s_barrier
      s_cmp_lg_u32 s{S.S_W}, 0
      s_cbranch_scc1 L_cp_noinit""")
    one_lane(b, f"""
      v_mov_b32 v20, {4*D_CINIT}
      v_mov_b32 v21, 1
      global_atomic_add v20, v21, s[{P_DBG}:{P_DBG+1}] sc1""")
    b.raw("L_cp_noinit:")
    gen_weights(b)
    b.raw(f"""
      s_cmp_lg_u32 s{S.S_W}, 0
      s_cbranch_scc1 L_cp_w2
      s_mov_b32 s{S.S_CNT}, 0
L_cp_poll:
      v_mov_b32 v20, {4*D_CINIT}
      v_mov_b32 v21, {4*D_KV}
      global_load_dwordx2 v[22:23], v20, s[{P_DBG}:{P_DBG+1}] sc1
      global_load_dword v24, v21, s[{P_DBG}:{P_DBG+1}] sc1
      s_waitcnt vmcnt(0)
      v_readfirstlane_b32 s73, v22
      v_readfirstlane_b32 s72, v23
      v_readfirstlane_b32 s71, v24
      s_add_u32 s{S.S_CNT}, s{S.S_CNT}, 1
      s_cmp_gt_u32 s{S.S_CNT}, 400000
      s_cbranch_scc1 L_cp_go
      s_cmp_lt_u32 s73, 32
      s_cbranch_scc1 L_cp_again
      s_cmp_ge_u32 s71, 32
      s_cbranch_scc1 L_cp_go
L_cp_again:
      s_sleep 4
      s_branch L_cp_poll
L_cp_go:
      v_mov_b32 v20, 0
      v_mov_b32 v21, s72
      ds_write_b32 v20, v21 offset:{C.LDS_DUMP}
      s_waitcnt lgkmcnt(0)
L_cp_w2:
      s_barrier
      v_mov_b32 v20, 0
      ds_read_b32 v21, v20 offset:{C.LDS_DUMP}
      s_waitcnt lgkmcnt(0)
      v_readfirstlane_b32 s72, v21
      s_nop 3
      s_barrier""")
    S.gen_kxvx(b, nxt=False)
    for a in S.AQ + S.AK: S.zero(b.raw, a)
    S.gen_gprep(b)
    S.gen_gissue(b, '', 0)
    b.raw(f"""
      s_sub_u32 s73, s72, 1
      s_and_b32 s73, s73, s72
      s_cmp_eq_u32 s73, 0
      s_cbranch_scc0 L_steps""")

def gen_weights(b):
    S = C
    NS = 17
    reg_ops = [o for o in S.OPS if S.PLACE[o][0] != 'l']
    lds_ops = {S.PLACE[o][1]: o for o in S.OPS if S.PLACE[o][0] == 'l'}
    seq = list(reg_ops)
    for p in range(55, 72): seq.append(lds_ops[p % NS])
    b.raw(f"""
      v_lshrrev_b32 v24, 5, v11              ; hi5
      v_bfe_u32 v25, v11, 3, 2               ; gb
      v_bfe_u32 v26, v11, 1, 2               ; r
      v_and_b32 v27, 1, v11                  ; colhalf
      v_lshlrev_b32 v27, 4, v27              ; *16 bytes
      v_lshrrev_b32 v28, 1, v25              ; gb>>1
      v_and_b32 v29, 1, v25                  ; gb&1
      v_lshrrev_b32 v30, 1, v26              ; r>>1 (half)
      v_and_b32 v31, 1, v26                  ; r&1 (b)
      ; qkv c<8: 32hi5 + 4(gb>>1) + (gb&1) + 16b + 2half
      v_lshlrev_b32 v32, 5, v24
      v_lshl_add_u32 v32, v28, 2, v32
      v_add_u32 v32, v32, v29
      v_lshl_add_u32 v32, v31, 4, v32
      v_lshl_add_u32 v32, v30, 1, v32
      v_lshlrev_b32 v32, 13, v32
      v_add_u32 v20, v32, v27
      ; qkv c=8: 32(gb&1) + 16hi5 + 4(gb>>1) + r
      v_lshlrev_b32 v32, 5, v29
      v_lshl_add_u32 v32, v24, 4, v32
      v_lshl_add_u32 v32, v28, 2, v32
      v_add_u32 v32, v32, v26
      v_lshlrev_b32 v32, 13, v32
      v_add_u32 v21, v32, v27
      v_lshlrev_b32 v32, 1, v24
      v_lshl_add_u32 v32, v28, 4, v32
      v_lshl_add_u32 v32, v29, 2, v32
      v_lshl_add_u32 v32, v30, 3, v32
      v_add_u32 v32, v32, v31
      v_mul_u32_u24 v32, 1152, v32
      v_add_u32 v22, v32, v27
      s_mul_i32 s88, s{S.S_W}, {S.W_PER_WAVE}
      s_add_u32 s88, s88, {S.LDS_W}
      v_lshlrev_b32 v23, 3, v11
      v_add_u32 v23, s88, v23
      ; scalar column bases (bytes): qkv: (h*128 + 32w)*2 ; wo: h*128*1152
      s_lshl_b32 s89, s{S.S_H}, 8
      s_lshl_b32 s90, s{S.S_W}, 6
      s_add_u32 s89, s89, s90
      s_mul_i32 s90, s{S.S_H}, {128*1152}
      s_mov_b32 s86, {576*8192}
      s_mov_b32 s87, 0x00020000
      s_mov_b32 s94, {4096*1152}
      s_mov_b32 s95, 0x00020000
      s_mov_b32 s92, s82
      s_mov_b32 s93, s83""")
    cur_mat = [None]
    def dma(p):
        name, c = seq[p]
        slot = p % NS
        if name[0] in 'qkv':
            if cur_mat[0] != name[0]:
                src = {'q': 76, 'k': 78, 'v': 80}[name[0]]
                b.raw(f"s_mov_b32 s84, s{src}\ns_mov_b32 s85, s{src+1}")
                cur_mat[0] = name[0]
            t = int(name[1])
            if c == 8:
                b.raw(f"s_add_u32 s91, s89, {512*8192 + 32*t}"); vo = 21
            else:
                vo = 20
                if name[0] == 'v':
                    b.raw(f"s_add_u32 s91, s89, {64*c*8192 + 32*t}")
                else:
                    d = DELTA[c]
                    b.raw(f"s_xor_b32 s91, s{S.S_W}, {d & 3}\ns_or_b32 s91, s91, {d & 4}\ns_lshl_b32 s91, s91, 19\ns_add_u32 s91, s91, s89\ns_add_u32 s91, s91, {32*t}")
            for io in range(2):
                b.raw(f"s_add_u32 m0, s88, {slot*2048 + io*1024}")
                if io == 1: b.raw(f"s_add_u32 s91, s91, {8*8192}")
                b.raw(f"s_nop 0\nbuffer_load_dwordx4 v{vo}, s[84:87], s91 offen lds")
        else:
            i = int(name[1:])
            if i < 8: b.raw(f"s_lshl_b32 s91, s{S.S_W}, 8\ns_add_u32 s91, s91, {32*i + 64*c*1152}")
            else: b.raw(f"s_lshl_b32 s91, s{S.S_W}, 5\ns_add_u32 s91, s91, {1024 + 64*c*1152}")
            b.raw(f"s_add_u32 s91, s91, s90")
            for io in range(2):
                b.raw(f"s_add_u32 m0, s88, {slot*2048 + io*1024}")
                if io == 1: b.raw(f"s_add_u32 s91, s91, {32*1152}")
                b.raw(f"s_nop 0\nbuffer_load_dwordx4 v{vo if False else 22}, s[92:95], s91 offen lds")
    for p in range(NS): dma(p)
    for p in range(72):
        slot = p % NS
        remaining = min(72, p + NS) - (p + 1)
        b.raw(f"s_waitcnt vmcnt({2*remaining})")
        pl = S.PLACE[seq[p]]
        if pl[0] == 'l': dst = lambda u: f'v[{40+2*u}:{41+2*u}]'
        else: dst = lambda u, pl=pl: f'{pl[0]}[{pl[1]+2*u}:{pl[1]+2*u+1}]'
        for u in range(4):
            b.raw(f"ds_read_b64_tr_b16 {dst(u)}, v23 offset:{slot*2048 + u*512}")
        b.raw("s_waitcnt lgkmcnt(0)")
        if pl[0] == 'l':
            b.raw(f"ds_write_b128 v{S.WBASE}, v[40:43] offset:{slot*2048}\nds_write_b128 v{S.WBASE}, v[44:47] offset:{slot*2048+1024}")
        if p + NS < 72: dma(p + NS)
    b.raw(f"s_waitcnt lgkmcnt(0)\ns_mov_b32 m0, {S.LDS_DUMP}")

def gen_main(dbg=False, opts={}):
    b = Block()
    b.raw("s_cmp_ge_u32 s2, 256\ns_cbranch_scc1 L_main_exit")
    load_ptrs(b)
    b.raw(f"s_load_dwordx2 s[{P_DBG}:{P_DBG+1}], s[0:1], 104\ns_waitcnt lgkmcnt(0)")
    gen_roles(b)
    gen_worker(b)
    gen_chain_prologue(b)
    C.gen_step(b, False, tag='f', exit_label='L_chain_end', **opts)
    C.gen_step(b, True, tag='s', exit_label='L_chain_end', **opts)
    b.raw("L_chain_end:\ns_waitcnt vmcnt(0)\nL_main_exit:\ns_endpgm")
    return b.finish()

if __name__ == '__main__':
    NAME = 'gated_mix__memory_aug_recurrent_mem_tr__swiglu_ffn__prompt'
    hdr = open('cdna_kernels/' + NAME + '.s.ref').read().split('; Override launch geometry')[0]
    o = hdr + """; @launch kernel=main_kernel grid=(256,1,1) block=(256,1,1) lds=163840
; @launch kernel=attn_kernel grid=(520,1,1) block=(256,1,1) lds=0
; @launch kernel=oproj_kernel grid=(144,1,1) block=(256,1,1) lds=98304
.amdgcn_target "amdgcn-amd-amdhsa--gfx950"
.text
"""
    o += kernel_text('main_kernel', gen_main(opts=dict(gdelay=1, nv1=3, kvcheck=1)))
    o += kernel_text('attn_kernel', k_attn())
    o += kernel_text('oproj_kernel', k_oproj('oproj', 'oproj'))
    o += '.section .rodata,"a"\n' + desc('main_kernel', 512, 256) + desc('attn_kernel', 256, 256) + desc('oproj_kernel', 160, 128)
    out = sys.argv[1] if len(sys.argv) > 1 else 'cdna_kernels/' + NAME + '.s'
    open(out, 'w').write(o)
```

```python
from gemm import *
DPPM = 'row_mask:0xf bank_mask:0xf'
def gen_attn_unit(b, s_seg, s_h, tag='', sc1=False):
    SC = ' sc1' if sc1 else ''
    Q = [[8 + 16*tq + 4*k for k in range(4)] for tq in range(2)]
    KX = [[40 + 16*t + 4*k for k in range(4)] for t in range(2)]
    KM = [72 + 4*k for k in range(4)]
    VX = [88 + 4*T for T in range(8)]
    VM = [120 + 4*w for w in range(4)]
    S = 136
    SRD = f's[{G_OSRD}:{G_OSRD+3}]'
    b.raw(f"""
      v_and_b32 v1, 63, v0
      v_lshlrev_b32 v2, 4, v1                 ; lane*16
      s_lshl_b32 s{G_T0}, s{s_seg}, 5
      s_add_u32 s{G_T0}, s{G_T0}, s{s_h}       ; u = seg*32+h
      s_lshl_b32 s{G_T1}, s{G_T0}, 13          ; *8192
      s_lshl_b32 s{G_T2}, s{G_T0}, 12          ; *4096
    """)
    b.begin('attn_ld')
    e = b.e
    def loads(base_sreg, region, regs, n, tmp):
        e(f's_add_u32 s{tmp}, s{base_sreg}, {region}')
        for i in range(n):
            if i == 4:
                e(f's_add_u32 s{tmp}, s{tmp}, 4096')
            e(f'buffer_load_dwordx4 {R(regs[i])}, v2, {SRD}, s{tmp} offen offset:{(i & 3)*1024}{SC}')
    loads(G_T1, WS_QX, Q[0] + Q[1], 8, G_T3)
    loads(G_T2, WS_KM, KM, 4, G_T3)
    loads(G_T1, WS_KX, KX[0] + KX[1], 8, G_T3)
    loads(G_T2, WS_VM, VM, 4, G_T3)
    loads(G_T1, WS_VX, VX, 8, G_T3)
    ONES = 160; ONH = 164; NEG = 166; C = 167; NN = 168; G4 = 169
    for i in range(4): e(f'v_mov_b32 v{ONES+i}, 0x3f803f80')
    for i in range(2): e(f'v_mov_b32 v{ONH+i}, 0x3f80')
    e(f'v_mov_b32 v{NEG}, 0xff800000')
    e(f'v_and_b32 v{NN}, 15, v1')
    e(f'v_lshrrev_b32 v{G4}, 4, v1')
    e(f'v_lshlrev_b32 v{G4}, 2, v{G4}')
    cval = hex(int(np.float32(128**-0.5 * np.log2(np.e)).view(np.uint32)))
    e(f's_mov_b32 s{G_K}, {cval}')
    for i in range(4):
        e(f'v_add_u32 v170, {i}, v{G4}')
        e(f'v_cmp_le_u32 s[{64+2*i}:{65+2*i}], v170, v{NN}')
    for tq in range(2):
        sm, s0, s1 = S + 12*tq, S + 12*tq + 4, S + 12*tq + 8
        for k in range(4):
            e(f'v_mfma_f32_16x16x32_bf16 {R(sm)}, {R(KM[k])}, {R(Q[tq][k])}, ' + ('0' if k == 0 else R(sm)))
            e(f'v_mfma_f32_16x16x32_bf16 {R(s0)}, {R(KX[0][k])}, {R(Q[tq][k])}, ' + ('0' if k == 0 else R(s0)))
            if tq == 1: e(f'v_mfma_f32_16x16x32_bf16 {R(s1)}, {R(KX[1][k])}, {R(Q[tq][k])}, ' + ('0' if k == 0 else R(s1)))
    O = 176
    for tq in range(2):
        sm, s0, s1 = S + 12*tq, S + 12*tq + 4, S + 12*tq + 8
        diag = s0 if tq == 0 else s1
        for i in range(4): e(f'v_cndmask_b32 v{diag+i}, v{NEG}, v{diag+i}, s[{64+2*i}:{65+2*i}]')
        vals = [sm, sm+1] + [s0+i for i in range(4)] + ([s1+i for i in range(4)] if tq == 1 else [])
        MX, TT = 212 + 2*tq, 213 + 2*tq
        e(f'v_max3_f32 v{MX}, v{vals[0]}, v{vals[1]}, v{vals[2]}')
        rest = vals[3:]
        while len(rest) >= 2:
            e(f'v_max3_f32 v{MX}, v{MX}, v{rest[0]}, v{rest[1]}'); rest = rest[2:]
        if rest: e(f'v_max_f32 v{MX}, v{MX}, v{rest[0]}')
        for sw in ('16', '32'):
            e(f'v_mov_b32 v{TT}, v{MX}')
            e(f'v_permlane{sw}_swap_b32 v{MX}, v{TT}')
            e(f'v_max_f32 v{MX}, v{MX}, v{TT}')
        e(f'v_mul_f32 v{MX}, s{G_K}, v{MX}')
        for r in vals:
            e(f'v_fma_f32 v{r}, v{r}, s{G_K}, -v{MX}')
            e(f'v_exp_f32 v{r}, v{r}')
        PB = 216 + 8*tq; PM = PB + 4
        e(f'v_cvt_pk_bf16_f32 v{PB}, v{s0}, v{s0+1}')
        e(f'v_cvt_pk_bf16_f32 v{PB+1}, v{s0+2}, v{s0+3}')
        if tq == 1:
            e(f'v_cvt_pk_bf16_f32 v{PB+2}, v{s1}, v{s1+1}')
            e(f'v_cvt_pk_bf16_f32 v{PB+3}, v{s1+2}, v{s1+3}')
        else:
            e(f'v_mov_b32 v{PB+2}, 0'); e(f'v_mov_b32 v{PB+3}, 0')
        e(f'v_cvt_pk_bf16_f32 v{PM}, v{sm}, v{sm}')
        e(f'v_cvt_pk_bf16_f32 v{PM+1}, v{sm+1}, v{sm+1}')
        SUM = 208
        e(f'v_mfma_f32_16x16x32_bf16 {R(SUM)}, {R(ONES)}, {R(PB)}, 0')
        e(f'v_mfma_f32_16x16x16_bf16 {R(SUM)}, {R(ONH,2)}, {R(PM,2)}, {R(SUM)}')
        for T in range(8):
            o = O + 4*T
            e(f'v_mfma_f32_16x16x32_bf16 {R(o)}, {R(VX[T])}, {R(PB)}, 0')
            e(f'v_mfma_f32_16x16x16_bf16 {R(o)}, {R(VM[T >> 1] + 2*(T & 1), 2)}, {R(PM,2)}, {R(o)}')
        RS = 232 + tq
        e(f'v_rcp_f32 v{RS}, v{SUM}')
        if tq == 0:
            e(f's_lshl_b32 s{G_T0}, s{s_seg}, 7')
            e(f's_lshl_b32 s{G_T1}, s{s_h}, 2')
            e(f's_add_u32 s{G_T0}, s{G_T0}, s{G_T1}')
            e(f's_lshl_b32 s{G_T0}, s{G_T0}, 11')
            e(f's_add_u32 s{G_T0}, s{G_T0}, {WS_O}')
            e(f's_add_u32 s{G_T1}, s{G_T0}, 4096')
            e(f'v_lshlrev_b32 v171, 7, v{G4}')
            e(f'v_lshlrev_b32 v172, 4, v{NN}')
            e(f'v_add_u32 v171, v171, v172')
        for T2 in range(4):
            d = 236 + 4*T2
            for hh in range(2):
                o = O + 4*(2*T2 + hh)
                for i in range(4): e(f'v_mul_f32 v{o+i}, v{o+i}, v{RS}')
                e(f'v_cvt_pk_bf16_f32 v{d+2*hh}, v{o}, v{o+1}')
                e(f'v_cvt_pk_bf16_f32 v{d+2*hh+1}, v{o+2}, v{o+3}')
            so = G_T0 if T2 < 2 else G_T1
            e(f'buffer_store_dwordx4 {R(d)}, v171, {SRD}, s{so} offen offset:{(T2 & 1)*2048 + tq*256}{SC}')
    b.raw('s_waitcnt vmcnt(0)')
```

```python
from asmgen import *
from layout import *

LDS_MEM = 0
LDS_SP = 9216
LDS_SPM = 13312
LDS_OX = 17408
LDS_ASEL = 19712
LDS_DUMP = 19968
LDS_DUMP2 = 20224
LDS_ONES = 20864
LDS_ONH = 21888
LDS_W = 24576
W_PER_WAVE = 17 * 2048

L16, IDX, WBASE, OXW, IDN, _idn1, OXR, PUBI, RDL, PFO = range(10)
def R(b, n=4): return f'v[{b}:{b+n-1}]'
M = [10, 14, 18]
WB = [22, 30]
AQ = [38, 42]; AK = [46, 50]
KX = [54, 58]; VX = [62, 66]
T0, T1 = 70, 71

S_WS = 4
S_H, S_W, S_STEP = 8, 9, 10
S_INBW = 11
S_IMGR, S_IMGW = 12, 13
S_KXO, S_VXO, S_KMO, S_VMO = 16, 17, 18, 19
S_C = 20
S_T0, S_T1, S_T2, S_T3 = 21, 22, 23, 24
S_G0, S_G2 = 25, 27
S_INBR = 28
S_PUB = 29
S_LIM = 30
S_CNT = 31
S_Q8 = 33
S_MASK = 34
S_SPW4 = 37
S_NSTEP = 38
S_TAG = 39
S_TS = 40
S_ARMG, S_ARMG2 = 55, 56
S_PFD = 57
S_SIG = 58
S_ACC = 84
S_DBG = 62
D_KV_IDX = 24
SRD = f's[{S_WS}:{S_WS+3}]'
OOB = 0x40000000

def placement():
    ops = operand_list()
    lds = []
    for p in (1, 3, 5, 7): lds += [('k0', p), ('k1', p)]
    lds += [('o%d' % i, 1) for i in range(9)]
    place = {}
    for n, o in enumerate(lds): place[o] = ('l', n)
    regs = [('a', 8*i) for i in range(32)] + [('v', 72 + 8*i) for i in range(23)]
    k = 0
    for o in ops:
        if o not in place:
            place[o] = regs[k]; k += 1
    assert k == 55
    return ops, place
OPS, PLACE = placement()
def wreg(o):
    p = PLACE[o]
    return f'{p[0]}[{p[1]}:{p[1]+7}]'
def smf(acc, a, bop): return f'v_smfmac_f32_16x16x64_bf16 {R(acc)}, {R(a)}, {bop}, v{IDX}'
def wread(f, dst, o, **kw):
    n = PLACE[o][1]
    f(f'ds_read_b128 {R(dst)}, v{WBASE} offset:{n*2048}', **kw)
    f(f'ds_read_b128 {R(dst+4)}, v{WBASE} offset:{n*2048+1024}', **kw)
def zero(f, dst, **kw):
    f(f'v_mov_b64 {R(dst,2)}, 0', **kw); f(f'v_mov_b64 {R(dst+2,2)}, 0', **kw)

def stamp(b, i, dbg):
    if dbg:
        b.raw(f'''s_memtime s[{S_TS}:{S_TS+1}]
                  s_waitcnt lgkmcnt(0)
                  s_sub_u32 s{S_TS+3}, s{S_TS}, s{S_TS+2}
                  s_add_u32 s{S_ACC+i}, s{S_ACC+i}, s{S_TS+3}
                  s_mov_b32 s{S_TS+2}, s{S_TS}''')
def sleep(n): return ('s_sleep %d' % n) if n else ''
DPPM = 'row_mask:0xf bank_mask:0xf'

ABL = 0
def qk4(e, p, m):
    odd = (p & 1) and p < 8
    e(smf(AQ[0], m, wreg(('q0', p))))
    e(smf(AQ[1], m, wreg(('q1', p))))
    e(smf(AK[0], m, R(WB[0], 8) if odd else wreg(('k0', p))))
    e(smf(AK[1], m, R(WB[1], 8) if odd else wreg(('k1', p))))

def gen_kxvx(b, nxt):
    d = 32*8192 if nxt else 0
    b.raw(f'''
      s_add_u32 s{S_KXO}, s{S_KXO}, {d}
      s_add_u32 s{S_VXO}, s{S_VXO}, {d}
      s_add_u32 s{S_T0}, s{S_KXO}, 4096
      s_add_u32 s{S_T1}, s{S_VXO}, 1024
      buffer_load_dwordx4 {R(KX[0])}, v{L16}, {SRD}, s{S_KXO} offen
      buffer_load_dwordx4 {R(KX[1])}, v{L16}, {SRD}, s{S_T0} offen
      buffer_load_dwordx4 {R(VX[0])}, v{L16}, {SRD}, s{S_VXO} offen
      buffer_load_dwordx4 {R(VX[1])}, v{L16}, {SRD}, s{S_T1} offen
    ''')

def gen_gissue(b, tag, gdelay):
    b.raw(f"""
      s_add_u32 s{S_T0}, s{S_IMGR}, s{S_G0}
      s_add_u32 s{S_T1}, s{S_T0}, 4096
      s_add_u32 s{S_T2}, s{S_IMGR}, s{S_G2}
      {sleep(gdelay)}
      buffer_load_dwordx4 {R(M[0])}, v{L16}, {SRD}, s{S_T0} offen sc1
      buffer_load_dwordx4 {R(M[1])}, v{L16}, {SRD}, s{S_T1} offen sc1
      buffer_load_dword v18, v19, {SRD}, s{S_T2} offen sc1
    """)

def gen_gprep(b):
    wread(b.raw, WB[0], ('k0', 1)); wread(b.raw, WB[1], ('k1', 1))
    b.raw(f"""
      v_add_u32 v{T0}, s{S_G0}, v{L16}
      v_lshrrev_b32 v19, 2, v{L16}
      v_add_u32 v{T1}, s{S_SPW4}, v19
      s_mov_b32 s{S_CNT}, 0
    """)

def gen_step(b, sc1_store, dbg=False, tag='', nv1=2, exit_label='L_end', gsleep=0, rdelay=0, gdelay=0, rwait=1, noex=0, abl=0, pfprio=-600, kvcheck=0, trail=0):
    global ABL
    ABL = abl
    ST = ' sc1' if sc1_store else ''
    tail = Block()
    b.raw(f"""
L_step{tag}:
      s_waitcnt vmcnt(0)
      v_max3_u32 v20, v10, v11, v12
      v_max3_u32 v21, v13, v14, v15
      v_max3_u32 v20, v20, v16, v17
      v_max3_u32 v20, v20, v21, v18
      v_cmp_eq_u32 vcc, -1, v20
      {'' if noex else 's_cbranch_vccnz L_gretry' + tag}
L_gok{tag}:
      ds_write_b128 v{T0}, {R(M[0])}
      ds_write_b128 v{T0}, {R(M[1])} offset:4096
      ds_write_b32 v{T1}, v18 offset:8192
    """)
    tail.raw(f"""
L_gretry{tag}:
      s_add_u32 s{S_CNT}, s{S_CNT}, 1
      s_add_u32 s{S_ACC+6}, s{S_ACC+6}, 1
      s_cmp_gt_u32 s{S_CNT}, s{S_LIM}
      s_cbranch_scc1 L_gfail{tag}
      {sleep(gsleep)}
      buffer_load_dwordx4 {R(M[0])}, v{L16}, {SRD}, s{S_T0} offen sc1
      buffer_load_dwordx4 {R(M[1])}, v{L16}, {SRD}, s{S_T1} offen sc1
      buffer_load_dword v18, v19, {SRD}, s{S_T2} offen sc1
      s_branch L_step{tag}
L_gfail{tag}:
      s_mov_b32 s{S_LIM}, 0
      s_branch L_gok{tag}
    """)
    qk4(b.raw, 0, M[0])
    b.raw('s_waitcnt lgkmcnt(0)\ns_barrier')
    stamp(b, 0, dbg)
    AV = [22, 26]; X = 30
    XD = AQ
    SM, SX0, SX1 = 46, 50, 38
    MG = 42; MGM = 34
    b.begin('A')
    e = b.e
    def memread(p, **kw):
        m = M[p % 3]
        if p == 8:
            e(f'ds_read_b128 {R(m)}, v{L16} offset:{8192}', **kw); return
        d = DELTA[p]
        if (d & 3) == 0: reg = T0
        else:
            reg = T1
            if not (d & 4): e(f'v_xor_b32 v{T1}, {(d & 3) << 10}, v{T0}', **kw)
        e(f'ds_read_b128 {R(m)}, v{reg} offset:{(d & 4) * 1024}', **kw)
    memread(2, prio=2000)
    memread(3, prio=1950)
    e(f's_add_u32 s{S_T3}, s{S_KXO}, {32*8192}')
    e(f'buffer_load_dword v{PFO}, {SRD}, s{S_T3} offen lds', prio=(pfprio))
    if trail: e(f'buffer_atomic_add v{RDL}, v{PUBI}, {SRD}, s{S_SIG} offen sc1', prio=(pfprio))
    for p in range(1, 9):
        m = M[p % 3]
        qk4(e, p, m)
        if p + 3 < 9: memread(p + 3)
        if (p & 1) and p + 2 < 8:
            wread(e, WB[0], ('k0', p + 2)); wread(e, WB[1], ('k1', p + 2))
    if ABL & 1:
        stamp(b, 8, dbg)
        b.begin('A2')
    if abl & 64: e = lambda *a, **k: None
    for t in range(2): zero(e, AV[t])
    for c in range(3):
        e(f'ds_read_b128 {R(M[c])}, v{L16} offset:{LDS_MEM + c*1024}')
    for t in range(2):
        e(f'v_add_f32 v{AK[t]}, v{AK[t]}, v{AK[t]+1}', prio=200)
        e(f'v_add_f32 v{AK[t]+2}, v{AK[t]+2}, v{AK[t]+3}', prio=200)
        e(f'v_add_f32 v{AQ[t]}, v{AQ[t]}, v{AQ[t]+1}', prio=200)
        e(f'v_add_f32 v{AQ[t]+2}, v{AQ[t]+2}, v{AQ[t]+3}', prio=200)
        e(f'v_cvt_pk_bf16_f32 v{AK[t]}, v{AK[t]}, v{AK[t]+2}', prio=200)
        e(f'v_cvt_pk_bf16_f32 v{AK[t]+1}, v{AQ[t]}, v{AQ[t]+2}', prio=200)
        e(f'v_mfma_f32_16x16x16_bf16 {R(XD[t])}, {R(AK[t],2)}, {R(IDN,2)}, 0', prio=200)
        e(f'v_cvt_pk_bf16_f32 v{X+2*t}, v{XD[t]}, v{XD[t]+1}', prio=200)
        e(f'v_cvt_pk_bf16_f32 v{X+2*t+1}, v{XD[t]+2}, v{XD[t]+3}', prio=200)
    e(f'v_mfma_f32_16x16x32_bf16 {R(SX0)}, {R(KX[0])}, {R(X)}, 0', prio=200)
    e(f'v_mfma_f32_16x16x32_bf16 {R(SX1)}, {R(KX[1])}, {R(X)}, 0', prio=200)
    e(f'v_mfma_f32_16x16x32_bf16 {R(SM)}, {R(X)}, {R(X)}, 0', prio=200)
    e(f'buffer_store_dwordx4 {R(X)}, v{L16}, {SRD}, s{S_KMO} offen' + (' sc1' if trail else ''), prio=-400)
    e(f's_mov_b64 vcc, s[{S_MASK}:{S_MASK+1}]')
    for i in range(4):
        e(f'v_cndmask_b32_dpp v{MG+i}, v{SX1+i}, v{SX0+i}, vcc quad_perm:[2,3,2,3] {DPPM}', prio=200)
    e(f'v_cndmask_b32_dpp v{MGM}, v{SM+1}, v{SM}, vcc quad_perm:[2,3,2,3] {DPPM}', prio=200)
    e(f'ds_write_b128 v{T0}, {R(MG)} offset:{LDS_SP}', prio=200)
    e(f'ds_write_b32 v{T0}, v{MGM} offset:{LDS_SPM}', prio=200)
    for c in range(nv1):
        m = M[c % 3]
        e(smf(AV[0], m, wreg(('v0', c))), prio=-300)
        e(smf(AV[1], m, wreg(('v1', c))), prio=-300)
        if c + 3 < 9: e(f'ds_read_b128 {R(m)}, v{L16} offset:{LDS_MEM + (c+3)*1024}', prio=-300)
    b.raw('s_waitcnt lgkmcnt(0)\ns_barrier')
    stamp(b, 1, dbg)
    b.begin('B')
    e = b.e
    if abl & 16: e = lambda *a, **k: None
    TP = [38, 42, 46, 50]
    for w in range(4): e(f'ds_read_b128 {R(TP[w])}, v{L16} offset:{LDS_SP + w*1024}', prio=500)
    o0 = LDS_SPM // 256
    e(f'ds_read2st64_b32 v[30:31], v{L16} offset0:{o0} offset1:{o0+4}', prio=500)
    e(f'ds_read2st64_b32 v[32:33], v{L16} offset0:{o0+8} offset1:{o0+12}', prio=500)
    e(f'v_mov_b64 v[34:35], -1', prio=400)
    e(f'buffer_store_dwordx2 v[34:35], v{PUBI}, {SRD}, s{S_ARMG} offen{ST}', prio=400)
    e(f'buffer_store_dword v34, v{PUBI}, {SRD}, s{S_ARMG2} offen{ST}', prio=400)
    e(f'buffer_store_dword v34, v{PUBI}, {SRD}, s{S_ARMG2} offen offset:32{ST}', prio=400)
    S = [38, 39, 40, 41]; SMm = 30
    for i in range(4):
        e(f'v_add_f32 v{TP[0]+i}, v{TP[0]+i}, v{TP[1]+i}', prio=300)
        e(f'v_add_f32 v{TP[2]+i}, v{TP[2]+i}, v{TP[3]+i}', prio=300)
        e(f'v_add_f32 v{TP[0]+i}, v{TP[0]+i}, v{TP[2]+i}', prio=300)
    e(f'v_add_f32 v30, v30, v31', prio=300)
    e(f'v_add_f32 v32, v32, v33', prio=300)
    e(f'v_add_f32 v30, v30, v32', prio=300)
    MX, TT = 42, 43
    e(f'v_max3_f32 v{MX}, v38, v39, v40', prio=300)
    e(f'v_max3_f32 v{MX}, v{MX}, v41, v30', prio=300)
    e(f'v_max_f32_dpp v{MX}, v{MX}, v{MX} quad_perm:[2,3,0,1] {DPPM}', prio=300)
    e(f'v_mov_b32 v{TT}, v{MX}', prio=300)
    e(f'v_permlane16_swap_b32 v{MX}, v{TT}', prio=300)
    e(f'v_max_f32 v{MX}, v{MX}, v{TT}', prio=300)
    e(f'v_mov_b32 v{TT}, v{MX}', prio=300)
    e(f'v_permlane32_swap_b32 v{MX}, v{TT}', prio=300)
    e(f'v_max_f32 v{MX}, v{MX}, v{TT}', prio=300)
    e(f'v_mul_f32 v{MX}, s{S_C}, v{MX}', prio=300)
    for r in S + [SMm]:
        e(f'v_fma_f32 v{r}, v{r}, s{S_C}, -v{MX}', prio=300)
        e(f'v_exp_f32 v{r}, v{r}', prio=300)
    PB = 44; PM = 32
    e(f'v_cvt_pk_bf16_f32 v{PB}, v38, v39', prio=300)
    e(f'v_cvt_pk_bf16_f32 v{PB+1}, v40, v41', prio=300)
    e(f'v_cvt_pk_bf16_f32 v{PM}, v30, v30', prio=300)
    e(f'v_mov_b32_dpp v{PB+2}, v{PB} quad_perm:[0,1,0,1] {DPPM}', prio=300)
    e(f'v_mov_b32_dpp v{PB+3}, v{PB+1} quad_perm:[0,1,0,1] {DPPM}', prio=300)
    e(f'v_mov_b32_dpp v{PM+1}, v{PM} quad_perm:[0,1,0,1] {DPPM}', prio=300)
    for c in range(nv1, 9):
        m = M[c % 3]
        e(smf(AV[0], m, wreg(('v0', c))))
        e(smf(AV[1], m, wreg(('v1', c))))
        if c + 3 < 9: e(f'ds_read_b128 {R(m)}, v{L16} offset:{LDS_MEM + (c+3)*1024}')
    VD = 22
    e(f'v_cvt_pk_bf16_f32 v{VD}, v{AV[0]}, v{AV[0]+1}')
    e(f'v_cvt_pk_bf16_f32 v{VD+1}, v{AV[0]+2}, v{AV[0]+3}')
    e(f'v_cvt_pk_bf16_f32 v{VD+2}, v{AV[1]}, v{AV[1]+1}')
    e(f'v_cvt_pk_bf16_f32 v{VD+3}, v{AV[1]+2}, v{AV[1]+3}')
    e(f'buffer_store_dwordx4 {R(VD)}, v{L16}, {SRD}, s{S_VMO} offen' + (' sc1' if trail else ''), prio=-500)
    ONES = 48; ONH = 52; AO = [38, 10]; SUM = 34; RS = 42
    BW = [54, 62, 22, 30]
    e(f'ds_read_b128 {R(ONES)}, v{L16} offset:{LDS_ONES}')
    e(f'ds_read_b64 {R(ONH,2)}, v{L16} offset:{LDS_ONH}')
    wread(e, BW[0], ('o0', 1), prio=-200)
    e(f'v_mfma_f32_16x16x32_bf16 {R(SUM)}, {R(ONES)}, {R(PB)}, 0')
    e(f'v_mfma_f32_16x16x16_bf16 {R(SUM)}, {R(ONH,2)}, {R(PM,2)}, {R(SUM)}')
    for t in range(2):
        e(f'v_mfma_f32_16x16x32_bf16 {R(AO[t])}, {R(VX[t])}, {R(PB)}, 0')
        e(f'v_mfma_f32_16x16x16_bf16 {R(AO[t])}, {R(VD+2*t,2)}, {R(PM,2)}, {R(AO[t])}')
    e(f'v_rcp_f32 v{RS}, v{SUM}')
    for t in range(2):
        for i in range(4): e(f'v_mul_f32 v{AO[t]+i}, v{AO[t]+i}, v{RS}')
        e(f'v_cvt_pk_bf16_f32 v{AO[t]}, v{AO[t]}, v{AO[t]+1}')
        e(f'v_cvt_pk_bf16_f32 v{AO[t]+1}, v{AO[t]+2}, v{AO[t]+3}')
        e(f'ds_write_b64 v{OXW}, {R(AO[t],2)} offset:{t*32}')
    b.raw(f"""
      s_cmp_eq_u32 s{S_STEP}, s{S_NSTEP}
      s_cbranch_scc1 {exit_label}
      s_waitcnt lgkmcnt(0)
      s_barrier
    """)
    stamp(b, 2, dbg)
    b.begin('C')
    e = b.e
    if abl & 32: e = lambda *a, **k: None
    OA = [14, 18]; ACC = [38, 42, 46, 50]; PK = 10
    for c2 in range(2): e(f'ds_read_b128 {R(OA[c2])}, v{OXR} offset:{c2*128}', prio=500)
    for i in range(1, 4): wread(e, BW[i], ('o%d' % i, 1), prio=400 - i)
    for i in range(4): zero(e, ACC[i], prio=300)
    e(f'v_lshrrev_b32 v{T1}, 2, v{L16}', prio=300)
    for i in range(9):
        a = ACC[i % 4]
        if i >= 4: zero(e, a)
        e(smf(a, OA[0], wreg(('o%d' % i, 0))))
        if i < 8:
            e(smf(a, OA[1], R(BW[i % 4], 8)))
            if i + 4 < 9: wread(e, BW[i % 4], ('o%d' % (i + 4), 1))
        else:
            e(smf(a, OA[1], R(BW[0], 8)))
        e(f'v_add_f32 v{a}, v{a}, v{a+1}')
        e(f'v_add_f32 v{a+2}, v{a+2}, v{a+3}')
        if i < 8 and i % 2 == 1:
            p = ACC[(i - 1) % 4]
            k = (i // 2) % 2
            e(f'v_cvt_pk_bf16_f32 v{PK+k}, v{p}, v{a}')
            e(f'v_cvt_pk_bf16_f32 v{PK+2+k}, v{p+2}, v{a+2}')
            if i % 4 == 3:
                e(f'v_bfi_b32 v{PK}, 1, s{S_TAG}, v{PK}')
                e(f'buffer_store_dwordx4 {R(PK)}, v{L16}, {SRD}, s{S_INBW} offen offset:{(i//4)*1024}{ST}')
        if i == 8:
            e(f'v_cvt_pk_bf16_f32 v{T0}, v{a}, v{a+2}')
            e(f'v_bfi_b32 v{T0}, 1, s{S_TAG}, v{T0}')
            e(f'buffer_store_dword v{T0}, v{T1}, {SRD}, s{S_Q8} offen{ST}')
    stamp(b, 3, dbg)
    LD = [10, 14, 18, 22, 26, 30, 34, 54]
    ASEL = 58; RA = 62; BAD = 66
    def adv1(f):
        f(f"""
      s_lshl_b32 s{S_SIG}, s{S_STEP}, 2
      s_add_u32 s{S_SIG}, s{S_SIG}, {WS_FLAGS + 4*F_SEG}
      s_cmp_eq_u32 s{S_W}, 3
      s_cselect_b32 s{S_SIG}, s{S_SIG}, {OOB}
      s_add_u32 s{S_STEP}, s{S_STEP}, 1
      s_add_u32 s{S_KMO}, s{S_KMO}, {32*4096}
      s_add_u32 s{S_VMO}, s{S_VMO}, {32*4096}
      s_xor_b32 s{S_INBW}, s{S_INBW}, 0x80000
      s_xor_b32 s{S_Q8}, s{S_Q8}, 0x80000
      s_add_u32 s{S_T0}, s{S_IMGR}, s{S_PUB}
      s_cmp_eq_u32 s{S_W}, 0
      s_cselect_b32 s{S_ARMG}, s{S_T0}, {OOB}
      s_cmp_eq_u32 s{S_W}, 1
      s_cselect_b32 s{S_ARMG2}, s{S_T0}, {OOB}
        """)
    def adv2(f):
        f(f"""
      s_lshr_b32 s{S_TAG}, s{S_STEP}, 1
      s_and_b32 s{S_TAG}, s{S_TAG}, 1
      s_xor_b32 s{S_INBR}, s{S_INBR}, 0x80000
      {'s_nop 0' if noex else 's_mov_b32 s%d, s%d' % (S_IMGR, S_IMGW)}
      s_add_u32 s{S_IMGW}, s{S_IMGW}, 9216
      s_cmp_eq_u32 s{S_IMGW}, {WS_IMG + 3*9216}
      s_cselect_b32 s{S_IMGW}, {WS_IMG}, s{S_IMGW}
        """)
    def zall(f):
        for a in AQ + AK: zero(f, a)
    if noex:
        zall(b.raw); adv1(b.raw); gen_kxvx(b, nxt=True) if not (abl & 8) else None
        adv2(b.raw); gen_gprep(b)
    else:
        b.raw(f"""
      s_cmp_lg_u32 s{S_W}, 0
      s_cbranch_scc1 L_rother{tag}
      v_and_b32 v{T0}, 0xf0, v{L16}
      ds_read_b128 {R(ASEL)}, v{T0} offset:{LDS_ASEL}
        """)
        zall(b.raw); adv1(b.raw)
        b.raw(f"""
      s_mov_b32 s{S_CNT}, 0
      v_mov_b32 v{BAD}, 0
      {'s_waitcnt vmcnt(0)' if rwait else ''}
      {sleep(rdelay)}
L_rpoll{tag}:
      s_mov_b32 s{S_T0}, s{S_INBR}
        """)
        for i in range(8):
            b.raw(f'buffer_load_dwordx4 {R(LD[i])}, v{RDL}, {SRD}, s{S_T0} offen sc1')
            if i < 7: b.raw(f's_add_u32 s{S_T0}, s{S_T0}, {4*9216}')
        b.raw(f"""
      s_add_u32 s{S_T1}, s{S_IMGW}, s{S_PUB}
      s_waitcnt lgkmcnt(0)
        """)
        if dbg: stamp(b, 8, dbg)
        for i in range(8):
            b.raw(f's_waitcnt vmcnt({7-i})')
            b.raw(f'v_mfma_f32_16x16x32_bf16 {R(RA)}, {R(ASEL)}, {R(LD[i])}, ' + ('0' if i == 0 else R(RA)))
            b.raw(f'v_bitop3_b32 v{BAD}, v{BAD}, v{LD[i]}, s{S_TAG} bitop3:0xf6')
        b.raw(f"""
      v_and_b32 v{BAD}, 1, v{BAD}
      v_cmp_ne_u32 vcc, 0, v{BAD}
      s_cbranch_vccnz L_rretry{tag}
L_rok{tag}:
      s_nop 3
      v_cvt_pk_bf16_f32 v{T0}, v{RA}, v{RA+1}
      v_cvt_pk_bf16_f32 v{T1}, v{RA+2}, v{RA+3}
      buffer_store_dwordx2 v[{T0}:{T1}], v{PUBI}, {SRD}, s{S_T1} offen{ST}
        """)
        if dbg: stamp(b, 5, dbg)
        gen_kxvx(b, nxt=True)
        b.raw(f'L_rjoin{tag}:')
        adv2(b.raw); gen_gprep(b)
        b.raw('s_barrier')
        tail.raw(f"""
L_rretry{tag}:
      s_add_u32 s{S_CNT}, s{S_CNT}, 1
      s_add_u32 s{S_ACC+7}, s{S_ACC+7}, 1
      v_mov_b32 v{BAD}, 0
      s_cmp_le_u32 s{S_CNT}, s{S_LIM}
      s_cbranch_scc1 L_rpoll{tag}
      s_mov_b32 s{S_LIM}, 0
      s_nop 7
      s_branch L_rok{tag}
L_rother{tag}:
      s_cmp_eq_u32 s{S_W}, 1
      s_cbranch_scc1 L_r8{tag}
        """)
        gen_kxvx(tail, nxt=True)
        zall(tail.raw); adv1(tail.raw)
        if kvcheck:
            tail.raw(f"""
      s_add_u32 s{S_T0}, s{S_STEP}, 1
      s_and_b32 s{S_T1}, s{S_T0}, 7
      s_cmp_lg_u32 s{S_T1}, 0
      s_cbranch_scc1 L_rjoin{tag}
      s_cmp_ge_u32 s{S_T0}, 64
      s_cbranch_scc1 L_rjoin{tag}
      s_lshr_b32 s{S_T0}, s{S_T0}, 3
      s_add_u32 s{S_T0}, s{S_T0}, {D_KV_IDX}
      s_lshl_b32 s{S_T0}, s{S_T0}, 2
      s_mov_b32 s{S_CNT}, 0
L_kvpoll{tag}:
      v_mov_b32 v10, s{S_T0}
      global_load_dword v11, v10, s[{S_DBG}:{S_DBG+1}] sc1
      s_waitcnt vmcnt(0)
      v_readfirstlane_b32 s{S_T1}, v11
      s_add_u32 s{S_CNT}, s{S_CNT}, 1
      s_cmp_gt_u32 s{S_CNT}, 400000
      s_cbranch_scc1 L_rjoin{tag}
      s_cmp_lt_u32 s{S_T1}, 32
      s_cbranch_scc1 L_kvpoll{tag}
            """)
        tail.raw(f"""
      s_branch L_rjoin{tag}
L_r8{tag}:
      v_and_b32 v{T0}, 0xf0, v{L16}
      ds_read_b128 {R(ASEL)}, v{T0} offset:{LDS_ASEL}
        """)
        zall(tail.raw); adv1(tail.raw)
        tail.raw(f"""
      s_mov_b32 s{S_CNT}, 0
      s_add_u32 s{S_T1}, s{S_IMGW}, s{S_PUB}
      {'s_waitcnt vmcnt(0)' if rwait else ''}
      {sleep(rdelay)}
L_rpoll8{tag}:
      buffer_load_dwordx4 v[10:13], v{RDL}, {SRD}, s{S_INBR} offen sc1
      s_add_u32 s{S_CNT}, s{S_CNT}, 1
      s_cmp_gt_u32 s{S_CNT}, s{S_LIM}
      s_cbranch_scc1 L_rfail8{tag}
      s_waitcnt vmcnt(0) lgkmcnt(0)
      v_mfma_f32_16x16x32_bf16 {R(RA)}, {R(ASEL)}, v[10:13], 0
      v_xor_b32 v{BAD}, s{S_TAG}, v10
      v_bitop3_b32 v{BAD}, v{BAD}, v11, s{S_TAG} bitop3:0xf6
      v_bitop3_b32 v{BAD}, v{BAD}, v12, s{S_TAG} bitop3:0xf6
      v_bitop3_b32 v{BAD}, v{BAD}, v13, s{S_TAG} bitop3:0xf6
      v_and_b32 v{BAD}, 1, v{BAD}
      v_cmp_ne_u32 vcc, 0, v{BAD}
      s_cbranch_vccnz L_rpoll8{tag}
      s_branch L_rok8{tag}
L_rfail8{tag}:
      s_mov_b32 s{S_LIM}, 0
      s_waitcnt vmcnt(0) lgkmcnt(0)
      v_mfma_f32_16x16x32_bf16 {R(RA)}, {R(ASEL)}, v[10:13], 0
      s_nop 7
L_rok8{tag}:
      s_nop 2
        """)
        for st in (2, 4, 8):
            for i in range(4):
                tail.raw(f'v_add_f32_dpp v{RA+i}, v{RA+i}, v{RA+i} row_ror:{st} {DPPM}')
        tail.raw(f"""
      v_cvt_pk_bf16_f32 v{T0}, v{RA}, v{RA+2}
      v_cvt_pk_bf16_f32 v{T1}, v{RA+1}, v{RA+3}
      buffer_store_dword v{T0}, v{PUBI}, {SRD}, s{S_T1} offen{ST}
      buffer_store_dword v{T1}, v{PUBI}, {SRD}, s{S_T1} offen offset:32{ST}
        """)
        gen_kxvx(tail, nxt=True)
        tail.raw(f's_branch L_rjoin{tag}')
    stamp(b, 4, dbg)
    if not (abl & 8): gen_gissue(b, tag, gdelay)
    b.raw(f's_branch L_step{tag}')
    b.items += tail.items
    return b

def gen_setup(b):
    cval = hex(int(np.float32(128**-0.5 * np.log2(np.e)).view(np.uint32)))
    b.raw(f"""
      v_lshrrev_b32 v10, 6, v0
      v_and_b32 v11, 63, v0                 ; lane
      s_nop 0
      v_readfirstlane_b32 s{S_W}, v10
      v_lshlrev_b32 v{L16}, 4, v11
      v_lshrrev_b32 v12, 4, v11             ; g
      v_and_b32 v13, 15, v11                ; n
      v_and_b32 v14, 1, v11
      v_mov_b32 v15, 0x4444
      v_mov_b32 v16, 0xeeee
      v_cmp_eq_u32 vcc, 1, v14
      v_cndmask_b32 v{IDX}, v15, v16, vcc
      s_mul_i32 s{S_T0}, s{S_W}, {W_PER_WAVE}
      s_add_u32 s{S_T0}, s{S_T0}, {LDS_W}
      v_add_u32 v{WBASE}, s{S_T0}, v{L16}
      v_lshlrev_b32 v14, 2, v12             ; 4g
      v_sub_u32 v14, v13, v14               ; n - 4g
      v_mov_b32 v15, 0x3f80
      v_mov_b32 v16, 0x3f800000
      v_cmp_eq_u32 vcc, 0, v14
      v_cndmask_b32 v17, 0, v15, vcc
      v_cmp_eq_u32 vcc, 1, v14
      v_cndmask_b32 v{IDN}, v17, v16, vcc
      v_cmp_eq_u32 vcc, 2, v14
      v_cndmask_b32 v17, 0, v15, vcc
      v_cmp_eq_u32 vcc, 3, v14
      v_cndmask_b32 v{IDN+1}, v17, v16, vcc
      v_lshrrev_b32 v14, 2, v13
      v_lshlrev_b32 v14, 1, v14
      v_and_b32 v15, 1, v13
      v_add_u32 v14, v14, v15
      v_mul_u32_u24 v14, 288, v14
      v_lshlrev_b32 v15, 3, v12
      s_lshl_b32 s{S_T0}, s{S_W}, 6
      s_add_u32 s{S_T0}, s{S_T0}, {LDS_OX}
      v_add3_u32 v14, v14, v15, s{S_T0}
      v_lshlrev_b32 v15, 3, v11
      v_add_u32 v15, {LDS_DUMP2}, v15
      v_and_b32 v16, 2, v13
      v_cmp_eq_u32 vcc, 2, v16
      v_cndmask_b32 v{OXW}, v15, v14, vcc
      ; OXR
      v_lshrrev_b32 v14, 1, v13
      v_mul_u32_u24 v14, 288, v14
      v_lshlrev_b32 v15, 5, v12
      v_and_b32 v16, 1, v13
      v_lshlrev_b32 v16, 4, v16
      v_add3_u32 v14, v14, v15, v16
      v_add_u32 v{OXR}, {LDS_OX}, v14
      v_lshlrev_b32 v14, 5, v12
      v_lshrrev_b32 v15, 2, v13
      v_lshlrev_b32 v15, 8, v15
      v_and_b32 v16, 2, v13
      v_lshlrev_b32 v16, 3, v16
      v_add3_u32 v14, v14, v15, v16
      v_and_b32 v16, 1, v13
      v_lshlrev_b32 v16, 3, v16
      v_add_u32 v14, v14, v16
      v_mov_b32 v15, {OOB}
      v_cmp_gt_u32 vcc, 2, v12
      v_cndmask_b32 v{PUBI}, v15, v14, vcc
      v_mul_u32_u24 v14, 9216, v12
      v_lshlrev_b32 v15, 4, v13
      v_add_u32 v{RDL}, v14, v15
      v_and_b32 v14, 15, v11
      v_lshlrev_b32 v14, 6, v14
      v_and_b32 v15, 16, v11
      v_lshlrev_b32 v15, 8, v15
      v_add_u32 v15, v14, v15
      v_and_b32 v16, 31, v11
      v_lshlrev_b32 v16, 6, v16
      s_lshl_b32 s{S_T0}, s{S_W}, 10
      s_add_u32 s{S_T0}, s{S_T0}, {WS_VX - WS_KX}
      v_add_u32 v16, s{S_T0}, v16
      v_cmp_gt_u32 vcc, 32, v11
      v_cndmask_b32 v{PFO}, v16, v15, vcc
      ; scalars
      s_mov_b32 s{S_C}, {cval}
      s_mov_b32 s{S_MASK}, 0xcccccccc
      s_mov_b32 s{S_MASK+1}, 0xcccccccc
      s_lshl_b32 s{S_SPW4}, s{S_W}, 8
      s_lshl_b32 s{S_G0}, s{S_W}, 10
      s_lshl_b32 s{S_G2}, s{S_W}, 8
      s_add_u32 s{S_G2}, s{S_G2}, 8192
      s_mov_b32 s{S_STEP}, 0
      s_mov_b32 s{S_TAG}, 0
      s_mov_b32 s{S_NSTEP}, 63
      s_mov_b32 s{S_LIM}, 200000
      s_mov_b32 m0, {LDS_DUMP}
      s_mul_i32 s{S_T0}, s{S_H}, 9216
      s_lshl_b32 s{S_T1}, s{S_W}, 11
      s_add_u32 s{S_INBW}, s{S_T0}, s{S_T1}
      s_add_u32 s{S_INBW}, s{S_INBW}, {WS_INBOX}
      s_lshl_b32 s{S_T1}, s{S_W}, 8
      s_add_u32 s{S_Q8}, s{S_T0}, s{S_T1}
      s_add_u32 s{S_Q8}, s{S_Q8}, {WS_INBOX + 8192}
      s_mov_b32 s{S_IMGR}, {WS_IMG}
      s_mov_b32 s{S_IMGW}, {WS_IMG + 9216}
      s_lshl_b32 s{S_T0}, s{S_H}, 13
      s_lshl_b32 s{S_T1}, s{S_W}, 10
      s_add_u32 s{S_KXO}, s{S_T0}, s{S_T1}
      s_add_u32 s{S_VXO}, s{S_KXO}, s{S_T1}
      s_add_u32 s{S_KXO}, s{S_KXO}, {WS_KX}
      s_add_u32 s{S_VXO}, s{S_VXO}, {WS_VX}
      s_lshl_b32 s{S_T0}, s{S_H}, 12
      s_add_u32 s{S_KMO}, s{S_T0}, s{S_T1}
      s_add_u32 s{S_KMO}, s{S_KMO}, {WS_KM}
      s_add_u32 s{S_VMO}, s{S_T0}, s{S_T1}
      s_add_u32 s{S_VMO}, s{S_VMO}, {WS_VM}
      s_mov_b32 s{S_ARMG}, {OOB}
      s_mov_b32 s{S_ARMG2}, {OOB}
      s_lshr_b32 s{S_T1}, s{S_H}, 2
      s_and_b32 s{S_T2}, s{S_H}, 3
      s_lshl_b32 s{S_T1}, s{S_T1}, 10
      s_lshl_b32 s{S_T3}, s{S_T2}, 8
      s_add_u32 s{S_INBR}, s{S_T1}, s{S_T3}
      s_add_u32 s{S_INBR}, s{S_INBR}, {WS_INBOX}
      s_lshl_b32 s{S_T3}, s{S_T2}, 6
      s_add_u32 s{S_PUB}, s{S_T1}, s{S_T3}
      s_cmp_eq_u32 s{S_W}, 1
      s_cbranch_scc0 L_setup_no8
      s_lshr_b32 s{S_T1}, s{S_H}, 3
      s_and_b32 s{S_T2}, s{S_H}, 7
      s_lshl_b32 s{S_T3}, s{S_T1}, 8
      s_lshl_b32 s{S_T0}, s{S_T2}, 5
      s_add_u32 s{S_INBR}, s{S_T3}, s{S_T0}
      s_add_u32 s{S_INBR}, s{S_INBR}, {WS_INBOX + 8192}
      v_lshrrev_b32 v14, 1, v11
      v_mul_u32_u24 v14, 9216, v14
      v_and_b32 v15, 1, v11
      v_lshlrev_b32 v15, 4, v15
      v_add_u32 v{RDL}, v14, v15
      s_lshl_b32 s{S_T3}, s{S_T1}, 2
      s_add_u32 s{S_PUB}, s{S_T3}, 8192
      s_lshl_b32 s{S_T2}, s{S_T2}, 1
      v_add_u32 v14, s{S_T2}, v13           ; c
      v_and_b32 v15, 3, v14
      v_lshlrev_b32 v15, 4, v15
      v_lshrrev_b32 v16, 2, v14
      v_lshlrev_b32 v16, 2, v16
      v_add3_u32 v14, v15, v16, v12
      v_lshlrev_b32 v14, 4, v14
      v_mov_b32 v15, {OOB}
      v_cmp_gt_u32 vcc, 2, v12
      v_cndmask_b32 v14, v15, v14, vcc
      v_cmp_gt_u32 vcc, 2, v13
      v_cndmask_b32 v{PUBI}, v15, v14, vcc
L_setup_no8:
      s_mov_b32 s{S_SIG}, {OOB}
      s_cmp_eq_u32 s{S_W}, 3
      s_cbranch_scc0 L_setup_no3
      v_mov_b32 v15, {OOB}
      v_cmp_eq_u32 vcc, 0, v11
      v_cndmask_b32 v{PUBI}, v15, 0, vcc
      v_mov_b32 v{RDL}, 1
L_setup_no3:
    """)
    b.raw(f"""
      v_and_b32 v18, 1, v13
      v_lshlrev_b32 v18, 4, v18
      v_mov_b32 v19, 0x3f80
      v_lshlrev_b32 v19, v18, v19
      v_lshrrev_b32 v18, 1, v13
      v_cmp_eq_u32 vcc, 0, v18
      v_cndmask_b32 v14, 0, v19, vcc
      v_cmp_eq_u32 vcc, 1, v18
      v_cndmask_b32 v15, 0, v19, vcc
      v_cmp_eq_u32 vcc, 2, v18
      v_cndmask_b32 v16, 0, v19, vcc
      v_cmp_eq_u32 vcc, 3, v18
      v_cndmask_b32 v17, 0, v19, vcc
      v_lshlrev_b32 v18, 4, v13
      ds_write_b128 v18, v[14:17] offset:{LDS_ASEL}
      v_mov_b32 v14, 0x3f803f80
      v_mov_b32 v15, 0x3f803f80
      v_mov_b32 v16, 0x3f803f80
      v_mov_b32 v17, 0x3f803f80
      ds_write_b128 v{L16}, v[14:17] offset:{LDS_ONES}
      v_mov_b32 v14, 0x3f80
      v_mov_b32 v15, 0x3f80
      ds_write_b128 v{L16}, v[14:17] offset:{LDS_ONH}
    """)
```

```python
from asmgen import *
from layout import *

def R(b, n=4): return f'v[{b}:{b+n-1}]'
def A(b, n=16): return f'a[{b}:{b+n-1}]'

XF = [[16 + 16*s + 4*j for j in range(4)] for s in range(2)]
WF = [[48 + 16*s + 4*j for j in range(4)] for s in range(2)]
VXA = [80, 81, 82, 83]
VWA = [84, 85, 86, 87]
VDX = [88, 89]; VDW = 90
VT = 96
G_XSRD = 8
G_WSRD = 12
G_OSRD = 16
G_XOFF = 20
G_WOFF = 21
G_LDW4 = 22
G_WSTEP = 23
G_M0 = 24
G_M0W = 25
G_K = 26
G_T0, G_T1, G_T2, G_T3 = 27, 28, 29, 30
G_W = 31
G_STG = 32
LDX = 1152
import os
TA = int(os.environ.get('TOUCH_A', '0'))
TB = int(os.environ.get('TOUCH_B', '0'))
VTCH = 92
G_TOFF = 88
G_TSTEP = 89
G_TSRD = 84
A_DUMP = 131072 + 1024

def a_setup(b, ldw_reg_note=''):
    b.raw(f"""
      v_and_b32 v1, 63, v0                  ; lane
      v_and_b32 v2, 31, v1                  ; l&31
      v_lshrrev_b32 v3, 5, v1               ; hi
      s_lshr_b32 s{G_T0}, s{G_W}, 1          ; wm
      s_lshl_b32 s{G_T0}, s{G_T0}, 14        ; 128*128*wm
      v_lshlrev_b32 v4, 7, v2
      v_add_u32 v4, s{G_T0}, v4
      v_lshrrev_b32 v5, 1, v2
      v_and_b32 v5, 7, v5                   ; sw
      v_xor_b32 v5, v5, v3
      v_lshlrev_b32 v5, 4, v5
      v_add_u32 v{VXA[0]}, v4, v5
      v_xor_b32 v{VXA[1]}, 32, v{VXA[0]}
      v_xor_b32 v{VXA[2]}, 64, v{VXA[0]}
      v_xor_b32 v{VXA[3]}, 96, v{VXA[0]}
      v_lshrrev_b32 v4, 3, v1
      v_mul_u32_u24 v4, {LDX}, v4
      v_and_b32 v5, 7, v1
      v_lshrrev_b32 v6, 4, v1
      v_xor_b32 v5, v5, v6
      v_lshlrev_b32 v7, 4, v5
      v_add_u32 v{VDX[0]}, v4, v7
      v_xor_b32 v5, 4, v5
      v_lshlrev_b32 v7, 4, v5
      v_add_u32 v{VDX[1]}, v4, v7
    """)

def a_setup_w(b, hmode_sreg, ldw_sreg):
    b.raw(f"""
      v_and_b32 v1, 63, v0
      v_lshrrev_b32 v2, 4, v1               ; G
      v_and_b32 v3, 15, v1                  ; i
      v_lshrrev_b32 v4, 2, v3               ; r
      v_and_b32 v5, 3, v3                   ; c
      ; common = 32768 + (8*(G>>1) + r)*256 + ((2*(G&1) + (c>>1))<<4) + (c&1)*8
      v_lshrrev_b32 v6, 1, v2
      v_lshlrev_b32 v6, 3, v6
      v_add_u32 v6, v6, v4
      v_lshlrev_b32 v6, 8, v6
      v_and_b32 v7, 1, v2
      v_lshlrev_b32 v7, 1, v7
      v_lshrrev_b32 v8, 1, v5
      v_add_u32 v7, v7, v8
      v_lshlrev_b32 v7, 4, v7
      v_and_b32 v8, 1, v5
      v_lshlrev_b32 v8, 3, v8
      v_add3_u32 v6, v6, v7, v8
      v_add_u32 v6, 32768, v6
      v_lshlrev_b32 v7, 6, v4               ; r<<6  (4*r <<4)
      s_and_b32 s{G_T0}, s{G_W}, 1           ; wn
    """)
    for j in range(4):
        b.raw(f"""
      s_lshl_b32 s{G_T1}, s{G_T0}, 14
      s_mov_b32 s{G_T2}, {j << 6}
      s_lshl_b32 s{G_T3}, s{G_T0}, 7
      s_add_u32 s{G_T3}, s{G_T3}, {(j & 1) << 6}
      s_cmp_eq_u32 s{hmode_sreg}, 0
      s_cselect_b32 s{G_T1}, s{G_T1}, {(j >> 1) * 16384}
      s_cselect_b32 s{G_T2}, s{G_T2}, s{G_T3}
      v_xor_b32 v8, s{G_T2}, v7
      v_add3_u32 v{VWA[j]}, v6, v8, s{G_T1}
        """)
    b.raw(f"""
      v_lshrrev_b32 v2, 4, v1
      v_mul_lo_u32 v4, v2, s{ldw_sreg}
      v_lshlrev_b32 v5, 2, v2
      v_xor_b32 v5, v3, v5
      v_lshlrev_b32 v5, 4, v5
      v_add_u32 v{VDW}, v4, v5
    """)

def a_dma(f, spread=0, **kw):
    n = [0]
    def dma(txt):
        k2 = dict(kw)
        if spread: k2['early'] = n[0] * spread
        n[0] += 1
        f(txt, **k2)
    f(f's_add_u32 m0, s{G_M0}, s{G_STG}', **kw)
    f(f's_mov_b32 s{G_T0}, s{G_XOFF}', **kw)
    for i in range(8):
        dma(f'buffer_load_dwordx4 v{VDX[i & 1]}, s[{G_XSRD}:{G_XSRD+3}], s{G_T0} offen lds')
        if i < 7:
            f(f's_add_u32 m0, m0, 1024', **kw)
            f(f's_add_u32 s{G_T0}, s{G_T0}, {8*LDX}', **kw)
    f(f's_add_u32 m0, s{G_M0W}, s{G_STG}', **kw)
    f(f's_mov_b32 s{G_T0}, s{G_WOFF}', **kw)
    for i in range(8):
        dma(f'buffer_load_dwordx4 v{VDW}, s[{G_WSRD}:{G_WSRD+3}], s{G_T0} offen lds')
        if i < 7:
            f(f's_add_u32 m0, m0, 1024', **kw)
            f(f's_add_u32 s{G_T0}, s{G_T0}, s{G_LDW4}', **kw)
    f(f's_add_u32 s{G_XOFF}, s{G_XOFF}, 128', **kw)
    f(f's_add_u32 s{G_WOFF}, s{G_WOFF}, s{G_WSTEP}', **kw)
    f(f's_xor_b32 s{G_STG}, s{G_STG}, 0x10000', **kw)
    a_touch(f, **kw)

def a_touch(f, **kw):
    if not TA: return
    f(f's_mov_b32 m0, {A_DUMP}', **kw)
    f(f'buffer_load_dword v{VTCH}, s[{G_TSRD}:{G_TSRD+3}], s{G_TOFF} offen lds', **kw)
    f(f's_add_u32 s{G_TOFF}, s{G_TOFF}, s{G_TSTEP}', **kw)

def a_reads(f, ks, st, **kw):
    for j in range(4):
        f(f'ds_read_b128 {R(XF[st][j])}, v{VXA[ks]} offset:{j*4096}', **kw)
    for j in range(4):
        for u in range(2):
            f(f'ds_read_b64_tr_b16 {R(WF[st][j]+2*u, 2)}, v{VWA[j]} offset:{ks*4096 + u*1024}', **kw)

def a_mfmas(f, st, vmode, first, **kw):
    for jf in range(4):
        for jt in range(4):
            acc = A(16 * (4*jf + jt))
            c = '0' if first else acc
            if vmode: f(f'v_mfma_f32_32x32x16_bf16 {acc}, {R(XF[st][jt])}, {R(WF[st][jf])}, {c}', **kw)
            else: f(f'v_mfma_f32_32x32x16_bf16 {acc}, {R(WF[st][jf])}, {R(XF[st][jt])}, {c}', **kw)

def a_flip(f):
    for r in VXA + VWA: f(f'v_xor_b32 v{r}, 0x10000, v{r}')

A_SPREAD = 72
def a_part_a(e, vmode, first):
    for ks in range(3):
        a_reads(e, ks + 1, (ks + 1) & 1)
        a_mfmas(e, ks & 1, vmode, first and ks == 0)

def a_mid(b, vmode, dma, name, wait=None):
    if wait is None: wait = TA
    _ = """barrier(k); then [flip, reads(k+1,ks0), dma(k+2) spread, mfma(k,ks3), part a of step k+1]"""
    b.raw(f's_waitcnt vmcnt({wait}) lgkmcnt(0)\ns_barrier')
    b.begin(name)
    e = b.e
    a_flip(e)
    a_reads(e, 0, 0, prio=500)
    if dma: a_dma(e, spread=A_SPREAD)
    a_mfmas(e, 1, vmode, False, prio=300)
    a_part_a(e, vmode, False)

def a_mainloop(b, vmode, tag):
    b.raw(f's_mov_b32 s{G_STG}, 0')
    a_dma(b.raw); a_dma(b.raw)
    b.raw(f's_waitcnt vmcnt({16 + 2*TA})\ns_barrier')
    a_reads(b.raw, 0, 0)
    b.begin('a0')
    a_part_a(b.e, vmode, True)
    b.raw(f's_mov_b32 s{G_K}, 7\nL_ka{tag}:')
    a_mid(b, vmode, True, 'aloop')
    b.raw(f's_sub_u32 s{G_K}, s{G_K}, 1\ns_cmp_lg_u32 s{G_K}, 0\ns_cbranch_scc1 L_ka{tag}')
    a_mid(b, vmode, False, 'a7')
    b.begin('a8')
    a_mfmas(b.e, 1, vmode, False)

G_SEGSTR = 32*8192
VOUT = 91

def a_epi_kqv(b, vmode, sc1):
    ST = ' sc1' if sc1 else ''
    X = 1024 if vmode else 4096
    b.raw(f"""
      v_and_b32 v1, 63, v0
      v_lshrrev_b32 v2, 5, v1
      v_lshlrev_b32 v2, 8, v2
      v_and_b32 v3, 15, v1
      v_lshlrev_b32 v3, 4, v3
      v_bfe_u32 v4, v1, 4, 1
      v_mul_u32_u24 v4, {X}, v4
      v_add3_u32 v{VOUT}, v2, v3, v4
    """)
    for jt in range(4):
        b.begin(f'epi{jt}')
        e = b.e
        e(f's_add_u32 s{G_T0}, s{G_T2}, {jt * G_SEGSTR}')
        for jf in range(4):
            acc = 16 * (4*jf + jt)
            base = VT + 16 * (jf & 1)
            off = jf * (2048 if vmode else 1024)
            for half in range(2):
                t = base + 8 * half
                for q, rq in enumerate((half, half + 2)):
                    for i in range(4):
                        e(f'v_accvgpr_read_b32 v{t + 4*q + i}, a{acc + 4*rq + i}')
                d = base + 8 * half
                e(f'v_cvt_pk_bf16_f32 v{d}, v{t}, v{t+1}')
                e(f'v_cvt_pk_bf16_f32 v{d+1}, v{t+2}, v{t+3}')
                e(f'v_cvt_pk_bf16_f32 v{d+2}, v{t+4}, v{t+5}')
                e(f'v_cvt_pk_bf16_f32 v{d+3}, v{t+6}, v{t+7}')
                o = off + 512 * half
                if o < 4096:
                    e(f'buffer_store_dwordx4 {R(d)}, v{VOUT}, s[{G_OSRD}:{G_OSRD+3}], s{G_T0} offen offset:{o}{ST}')
                else:
                    e(f's_add_u32 s{G_T1}, s{G_T0}, {o & ~4095}')
                    e(f'buffer_store_dwordx4 {R(d)}, v{VOUT}, s[{G_OSRD}:{G_OSRD+3}], s{G_T1} offen offset:{o & 4095}{ST}')

def a_epi_h(b, sc1):
    ST = ' sc1' if sc1 else ''
    b.raw(f"""
      v_and_b32 v1, 63, v0
      v_lshrrev_b32 v2, 5, v1
      v_lshlrev_b32 v2, 9, v2
      v_and_b32 v3, 31, v1
      v_lshlrev_b32 v3, 4, v3
      v_add_u32 v{VOUT}, v2, v3
      s_mov_b32 s{G_T3}, 0xbfb8aa3b
    """)
    for jt in range(4):
        for j in range(2):
            b.begin(f'epih{jt}{j}')
            e = b.e
            e(f's_add_u32 s{G_T0}, s{G_T2}, {(jt * 144 + j) * 2048}')
            ag = 16 * (4*j + jt); au = 16 * (4*(j+2) + jt)
            for half in range(2):
                t = VT + 24 * half
                regs = [4*rq + i for rq in (half, half + 2) for i in range(4)]
                for k, r in enumerate(regs):
                    e(f'v_accvgpr_read_b32 v{t+k}, a{ag + r}')
                    e(f'v_accvgpr_read_b32 v{t+8+k}, a{au + r}')
                    e(f'v_mul_f32 v{t+16+k}, s{G_T3}, v{t+k}')
                    e(f'v_exp_f32 v{t+16+k}, v{t+16+k}')
                    e(f'v_add_f32 v{t+16+k}, 1.0, v{t+16+k}')
                    e(f'v_rcp_f32 v{t+16+k}, v{t+16+k}')
                    e(f'v_mul_f32 v{t+k}, v{t+k}, v{t+8+k}')
                    e(f'v_mul_f32 v{t+k}, v{t+k}, v{t+16+k}')
                for q in range(4):
                    e(f'v_cvt_pk_bf16_f32 v{t+8+q}, v{t+2*q}, v{t+2*q+1}')
                e(f'buffer_store_dwordx4 {R(t+8)}, v{VOUT}, s[{G_OSRD}:{G_OSRD+3}], s{G_T0} offen offset:{1024*half}{ST}')

BXF = [[16 + 8*s + 4*j for j in range(2)] for s in range(2)]
BWF = [32, 36]
BVXA = [40, 41, 42, 43]; BVWA = 44
BVDX = [45, 46]; BVDW = 47
B_STG = 24576
BTD = 9
G_DSTG = 32
G_RDD = 38
G_RSTG = 39
LDWB = 1152

def b_setup(b):
    b.raw(f"""
      v_and_b32 v1, 63, v0
      s_lshr_b32 s{G_T0}, s{G_W}, 1
      s_lshl_b32 s{G_T0}, s{G_T0}, 13        ; wm*8192
      v_lshlrev_b32 v{BVDX[0]}, 4, v1
      v_add_u32 v{BVXA[0]}, s{G_T0}, v{BVDX[0]}
      v_lshrrev_b32 v2, 4, v1
      v_and_b32 v3, 15, v1
      v_lshrrev_b32 v4, 2, v3
      v_and_b32 v5, 3, v3
      v_lshrrev_b32 v6, 1, v2
      v_lshlrev_b32 v6, 3, v6
      v_add_u32 v6, v6, v4
      v_lshlrev_b32 v6, 7, v6
      v_and_b32 v7, 1, v2
      v_lshlrev_b32 v7, 1, v7
      v_lshrrev_b32 v8, 1, v5
      v_add_u32 v7, v7, v8
      s_and_b32 s{G_T0}, s{G_W}, 1
      s_lshl_b32 s{G_T0}, s{G_T0}, 2
      v_add_u32 v7, s{G_T0}, v7
      v_lshrrev_b32 v8, 1, v4
      v_lshlrev_b32 v8, 2, v8
      v_xor_b32 v7, v7, v8
      v_lshlrev_b32 v7, 4, v7
      v_and_b32 v8, 1, v5
      v_lshlrev_b32 v8, 3, v8
      v_add3_u32 v6, v6, v7, v8
      v_add_u32 v{BVWA}, 16384, v6
      v_lshrrev_b32 v4, 3, v1
      v_lshrrev_b32 v5, 2, v4
      v_lshlrev_b32 v5, 4, v5
      v_and_b32 v6, 3, v4
      v_add_u32 v5, v5, v6
      v_mul_u32_u24 v5, {LDWB}, v5
      v_bfe_u32 v6, v4, 1, 1
      v_lshlrev_b32 v6, 2, v6
      v_and_b32 v7, 7, v1
      v_xor_b32 v6, v6, v7
      v_lshlrev_b32 v6, 4, v6
      v_add_u32 v{BVDW}, v5, v6
    """)

def b_dma(f, spread=0, **kw):
    n = [0]
    def dma(txt):
        k2 = dict(kw)
        if spread: k2['early'] = n[0] * spread
        n[0] += 1
        f(txt, **k2)
    f(f's_add_u32 m0, s{G_M0}, s{G_DSTG}', **kw)
    f(f's_mov_b32 s{G_T0}, s{G_XOFF}', **kw)
    for i in range(4):
        dma(f'buffer_load_dwordx4 v{BVDX[0]}, s[{G_XSRD}:{G_XSRD+3}], s{G_T0} offen sc1 lds')
        if i < 3:
            f(f's_add_u32 m0, m0, 1024', **kw)
            f(f's_add_u32 s{G_T0}, s{G_T0}, 1024', **kw)
    f(f's_add_u32 m0, s{G_M0W}, s{G_DSTG}', **kw)
    dma(f'buffer_load_dwordx4 v{BVDW}, s[{G_WSRD}:{G_WSRD+3}], s{G_WOFF} offen lds')
    f(f's_add_u32 m0, m0, 1024', **kw)
    f(f's_add_u32 s{G_T0}, s{G_WOFF}, {4*LDWB}', **kw)
    dma(f'buffer_load_dwordx4 v{BVDW}, s[{G_WSRD}:{G_WSRD+3}], s{G_T0} offen lds')
    f(f's_add_u32 s{G_XOFF}, s{G_XOFF}, 4096', **kw)
    f(f's_add_u32 s{G_WOFF}, s{G_WOFF}, {64*LDWB}', **kw)
    f(f's_add_u32 s{G_DSTG}, s{G_DSTG}, {B_STG}', **kw)
    f(f's_cmp_eq_u32 s{G_DSTG}, {4*B_STG}', **kw)
    f(f's_cselect_b32 s{G_DSTG}, 0, s{G_DSTG}', **kw)
    b_touch(f, **kw)

B_DUMP = 4 * B_STG
BVTCH = 49
def b_touch(f, **kw):
    if not TB: return
    f(f's_mov_b32 m0, {B_DUMP}', **kw)
    f(f'buffer_load_dword v{BVTCH}, s[{G_TSRD}:{G_TSRD+3}], s{G_TOFF} offen lds', **kw)
    f(f's_add_u32 s{G_TOFF}, s{G_TOFF}, s{G_TSTEP}', **kw)

def b_reads(f, ks, st, **kw):
    for j in range(2):
        f(f'ds_read_b128 {R(BXF[st][j])}, v{BVXA[0]} offset:{j*4096 + ks*1024}', **kw)
    for u in range(2):
        f(f'ds_read_b64_tr_b16 {R(BWF[st]+2*u, 2)}, v{BVWA} offset:{ks*2048 + u*512}', **kw)

def b_mfmas(f, st, first, **kw):
    for j in range(2):
        acc = A(16*j)
        f(f'v_mfma_f32_32x32x16_bf16 {acc}, {R(BWF[st])}, {R(BXF[st][j])}, ' + ('0' if first else acc), **kw)

B_SPREAD = 56
def b_part_a(e, first):
    for ks in range(3):
        b_reads(e, ks + 1, (ks + 1) & 1)
        b_mfmas(e, ks & 1, first and ks == 0)

def b_mid(b, dma, name, wait):
    b.raw(f's_waitcnt vmcnt({wait}) lgkmcnt(0)\ns_barrier')
    b.begin(name)
    e = b.e
    e(f's_add_u32 s{G_RSTG}, s{G_RSTG}, {B_STG}')
    e(f's_cmp_eq_u32 s{G_RSTG}, {4*B_STG}')
    e(f's_cselect_b32 s{G_RSTG}, 0, s{G_RSTG}')
    e(f's_mov_b32 s{G_RDD}, {B_STG}')
    e(f's_cselect_b32 s{G_RDD}, {-3*B_STG & 0xffffffff:#x}, s{G_RDD}')
    for r in [BVXA[0], BVWA]: e(f'v_add_u32 v{r}, s{G_RDD}, v{r}', prio=600)
    b_reads(e, 0, 0, prio=500)
    if dma: b_dma(e, spread=B_SPREAD)
    b_mfmas(e, 1, False, prio=300)
    b_part_a(e, False)

def b_mainloop(b, nsteps_sreg, tag):
    b.raw(f's_mov_b32 s{G_DSTG}, 0\ns_mov_b32 s{G_RSTG}, 0')
    for _ in range(BTD - 4): b_touch(b.raw)
    for _ in range(4): b_dma(b.raw)
    b.raw(f's_waitcnt vmcnt({18 + 4*TB})\ns_barrier')
    b_reads(b.raw, 0, 0)
    b.begin('b0')
    b_part_a(b.e, True)
    b.raw(f's_sub_u32 s{G_K}, s{nsteps_sreg}, 4\nL_kb{tag}:')
    b_mid(b, True, 'bloop', wait=12 + 3*TB)
    b.raw(f's_sub_u32 s{G_K}, s{G_K}, 1\ns_cmp_lg_u32 s{G_K}, 0\ns_cbranch_scc1 L_kb{tag}')
    b_mid(b, False, 'bm', wait=12 + 3*TB)
    b_mid(b, False, 'bn', wait=6 + 2*TB)
    b_mid(b, False, 'bo', wait=TB)
    b.begin('bz')
    b_mfmas(b.e, 1, False)
```

```python
from worker import *
from attn import *

def load_ptrs(b):
    b.raw(f"""
  s_load_dwordx2 s[{P_AX}:{P_AX+1}], s[0:1], 0
  s_load_dwordx2 s[{P_WQ}:{P_WQ+1}], s[0:1], 16
  s_load_dwordx2 s[{P_WK}:{P_WK+1}], s[0:1], 24
  s_load_dwordx2 s[{P_WV}:{P_WV+1}], s[0:1], 32
  s_load_dwordx2 s[{P_WO}:{P_WO+1}], s[0:1], 40
  s_load_dwordx2 s[{P_BX}:{P_BX+1}], s[0:1], 56
  s_load_dwordx2 s[{P_WG}:{P_WG+1}], s[0:1], 64
  s_load_dwordx2 s[{P_WU}:{P_WU+1}], s[0:1], 72
  s_load_dwordx2 s[{P_WD}:{P_WD+1}], s[0:1], 80
  s_load_dwordx2 s[{P_GW}:{P_GW+1}], s[0:1], 88
  s_load_dwordx2 s[{P_OUT}:{P_OUT+1}], s[0:1], 96
  s_load_dwordx2 s[{G_OSRD}:{G_OSRD+1}], s[0:1], 112
  v_lshrrev_b32 v1, 6, v0
  s_nop 0
  v_readfirstlane_b32 s{G_W}, v1
  s_waitcnt lgkmcnt(0)
  s_mov_b32 s{G_OSRD+2}, 0x10000000
  s_mov_b32 s{G_OSRD+3}, 0x00020000
    """)

def k_attn():
    b = Block()
    b.raw("""
  s_cmp_ge_u32 s2, 520
  s_cbranch_scc1 L_attn_exit
    """)
    load_ptrs(b)
    b.raw(f"""
  s_cmp_ge_u32 s2, 512
  s_cbranch_scc1 L_attn_gate
  s_lshl_b32 s62, s2, 2
  s_add_u32 s62, s62, s{G_W}
  s_lshr_b32 s80, s62, 5
  s_and_b32 s81, s62, 31
    """)
    gen_attn_unit(b, 80, 81)
    b.raw(f"""
  s_branch L_attn_exit
L_attn_gate:
  s_sub_u32 s80, s2, 512
    """)
    gen_gate_job(b, 80)
    b.raw("L_attn_exit:\n  s_endpgm")
    return b.finish()

def k_oproj(kind='oproj', name='oproj'):
    b = Block()
    b.raw(f"""
  s_cmp_ge_u32 s2, 144
  s_cbranch_scc1 L_{name}_exit
    """)
    load_ptrs(b)
    b.raw("""
  s_and_b32 s80, s2, 7             ; x
  s_lshr_b32 s81, s2, 3            ; k 0..17
  s_lshl_b32 s80, s80, 1
  s_cmp_ge_u32 s81, 9
  s_cselect_b32 s82, 1, 0
  s_add_u32 s80, s80, s82          ; mb = 2x + (k>=9)
  s_mov_b32 s90, s82
  s_mul_i32 s82, s82, 9
  s_sub_u32 s81, s81, s82          ; nt
  s_mul_i32 s80, s80, 9
  s_add_u32 s80, s80, s81          ; job
    """)
    gen_coreB_job(b, kind, 80, tag=name)
    b.raw(f"L_{name}_exit:\n  s_endpgm")
    return b.finish()

def kernel_text(name, lin):
    return f""".globl {name}
.p2align 8
.type {name},@function
{name}:
""" + text(lin)

def desc(name, vgpr, accum):
    return f""".p2align 6
.amdhsa_kernel {name}
  .amdhsa_next_free_vgpr {vgpr}
  .amdhsa_next_free_sgpr 102
  .amdhsa_accum_offset {accum}
  .amdhsa_group_segment_fixed_size 0
  .amdhsa_kernarg_size 120
  .amdhsa_user_sgpr_count 2
  .amdhsa_user_sgpr_kernarg_segment_ptr 1
  .amdhsa_system_sgpr_workgroup_id_x 1
.end_amdhsa_kernel
"""
if __name__ == '__main__':
    o = """; @launch kernel=down_kernel grid=(144,1,1) block=(256,1,1) lds=98304
; @launch kernel=attn_kernel grid=(520,1,1) block=(256,1,1) lds=0
; @launch kernel=oproj_kernel grid=(144,1,1) block=(256,1,1) lds=98304
.amdgcn_target "amdgcn-amd-amdhsa--gfx950"
.text
"""
    o += kernel_text('down_kernel', k_oproj('down', 'down'))
    o += kernel_text('attn_kernel', k_attn())
    o += kernel_text('oproj_kernel', k_oproj('oproj', 'oproj'))
    o += '.section .rodata,"a"\n' + desc('down_kernel', 160, 128) + desc('attn_kernel', 256, 256) + desc('oproj_kernel', 160, 128)
    open('tail_t.s', 'w').write(o)
```

```python
import numpy as np
NSEG=64; H=32; DH=128; DM=576; M=8; SEG=32

def mem_d(c, ga, half, s):
    if c == 8: return 512 + 16*(s >> 1) + 4*ga + 2*half + (s & 1)
    return 64*c + 16*(s & 3) + 4*ga + 2*half + (s >> 2)
def qkv_d_of_k(c, k):
    ga = k >> 4; q = (k >> 2) & 3; half = (k >> 1) & 1; b = k & 1
    return mem_d(c, ga, half, 2*q + b)
def wo_e_of_k(c2, k):
    ga = k >> 4; q = (k >> 2) & 3; half = (k >> 1) & 1; b = k & 1
    return 64*c2 + 16*ga + 8*half + 2*q + b
def bslot_k(gb, j):
    return 32*(j >> 3) + 8*gb + (j & 7)

def wo_tile(w, i):
    return 8*w + i if i < 8 else 32 + w

DELTA = [0, 4, 1, 5, 2, 6, 3, 7]
def qk_chunk(w, p):
    if p == 8: return 8
    d = DELTA[p]
    return (d & 4) | ((d & 3) ^ w)

def operand_list():
    ops = []
    for c in range(9):
        for name in ('q0', 'q1', 'k0', 'k1'):
            ops.append((name, c))
    for c in range(9):
        for name in ('v0', 'v1'):
            ops.append((name, c))
    for i in range(9):
        for c2 in range(2):
            ops.append(('o%d' % i, c2))
    return ops

def to_bf16_bits(x):
    x = np.ascontiguousarray(x, dtype=np.float32)
    u = x.view(np.uint32)
    r = (u + 0x7FFF + ((u >> 16) & 1)) >> 16
    return r.astype(np.uint16)
def bf16_to_f32(b):
    return (b.astype(np.uint32) << 16).view(np.float32)
def rbf(x):
    return bf16_to_f32(to_bf16_bits(x))

def weights_image(Wq, Wk, Wv, Wo):
    img = np.zeros((H, 4, 72, 2, 64, 8), np.uint16)
    lane = np.arange(64); gb = lane >> 4; n = lane & 15
    ops = operand_list()
    for oi, (name, c) in enumerate(ops):
        for j in range(16):
            k = bslot_k(gb, j)
            if name[0] in 'qkv':
                W = {'q': Wq, 'k': Wk, 'v': Wv}[name[0]]
                t = int(name[1])
                for w in range(4):
                    cc = qk_chunk(w, c) if name[0] in 'qk' else c
                    d = np.array([qkv_d_of_k(cc, int(kk)) for kk in k])
                    e = 32*w + 16*t + n
                    img[:, w, oi, j >> 3, :, j & 7] = W[d, :, e].T
            else:
                i = int(name[1:])
                e = np.array([wo_e_of_k(c, int(kk)) for kk in k])
                for w in range(4):
                    dcol = 16*wo_tile(w, i) + n
                    img[:, w, oi, j >> 3, :, j & 7] = Wo[:, e, dcol]
    return img

def mem_image(mem):
    img = np.zeros((9, 64, 8), np.uint16)
    for c in range(9):
        for L in range(64):
            ga = L >> 4; m = L & 15; r = m >> 1; half = m & 1
            for s in range(8):
                img[c, L, s] = mem[r, mem_d(c, ga, half, s)]
    return img
def mem_from_image(img):
    mem = np.zeros((8, 576), img.dtype)
    for c in range(9):
        for L in range(64):
            ga = L >> 4; m = L & 15; r = m >> 1; half = m & 1
            for s in range(8):
                mem[r, mem_d(c, ga, half, s)] = img[c, L, s]
    return mem

def kx_image(Kx):
    K = Kx.reshape(NSEG, 2, 16, H, 4, 2, 4, 4)
    return np.ascontiguousarray(K.transpose(0, 3, 1, 4, 6, 2, 5, 7)).reshape(NSEG, H, 2, 4, 64, 8)
def vx_image(Vx):
    V = Vx.reshape(NSEG, 2, 4, 4, H, 8, 16)
    return np.ascontiguousarray(V.transpose(0, 4, 5, 2, 6, 1, 3)).reshape(NSEG, H, 8, 64, 8)

def km_from_pub(km):
    out = np.zeros((km.shape[0], H, 8, 128), np.uint16)
    for L in range(64):
        g = L >> 4; n = L & 15; c = n >> 2; p = n & 3
        if p < 2:
            for kap in range(4):
                for j in range(8):
                    out[:, :, 2*c + p, 32*kap + 16*(j >> 2) + 4*g + (j & 3)] = km[:, :, kap, L, j]
    return out
def qm_from_pub(km):
    out = np.zeros((km.shape[0], H, 8, 128), np.uint16)
    for L in range(64):
        g = L >> 4; n = L & 15; c = n >> 2; p = n & 3
        if p >= 2:
            for kap in range(4):
                for j in range(8):
                    out[:, :, 2*c + p - 2, 32*kap + 16*(j >> 2) + 4*g + (j & 3)] = km[:, :, kap, L, j]
    return out
def vm_from_pub(vm):
    f = bf16_to_f32(vm)
    out = np.zeros((vm.shape[0], H, 8, 128), np.float32)
    for L in range(64):
        g = L >> 4; n = L & 15
        for w in range(4):
            for t in range(2):
                e = 32*w + 16*t + n
                out[:, :, 2*g, e] = f[:, :, w, L, 4*t + 0] + f[:, :, w, L, 4*t + 1]
                out[:, :, 2*g + 1, e] = f[:, :, w, L, 4*t + 2] + f[:, :, w, L, 4*t + 3]
    return out

WS_INBOX = 0
INBOX_SLOT = 0x80000
WS_IMG = 0xD0000
WS_KX = 0x100000
WS_VX = WS_KX + 0x1000000
WS_KM = WS_VX + 0x1000000
WS_VM = WS_KM + 0x800000
WS_WIMG = WS_VM + 0x800000
WS_END = WS_WIMG + 32*4*72*2048
WS_QX = WS_WIMG
WS_H = WS_QX + 0x1400000
WS_O = WS_H + 0x1400000
WS_B = WS_O + 0x1000000
WS_G = WS_B + 0x500000
WS_TOTAL = WS_G + 0x10000

def q_image(Q): return kx_image(Q)
def h_image(Hm):
    F = Hm.shape[1]
    Hh = Hm.reshape(64, 32, F // 32, 2, 4, 4)
    return np.ascontiguousarray(Hh.transpose(0, 2, 4, 1, 3, 5)).reshape(64, F // 32, 4, 32, 8)

WS_FLAGS = WS_TOTAL
F_SEG, F_QR, F_ATT, F_DN, F_CNT, F_GATE = 0, 64, 80, 144, 160, 320
WS_PART = WS_FLAGS + 0x10000
WS_END2 = WS_PART + 16*9*4*32768
assert WS_END2 < 0x10000000
```

```python
from gemm import *
P_AX, P_WQ, P_WK, P_WV, P_BX, P_WG, P_WU = 40, 42, 44, 46, 48, 50, 52
J_TYPE, J_MB, J_NT, J_HM, J_LDW = 33, 34, 35, 36, 37
J_WROW, J_XROW, J_XROW3 = 90, 91, 92

def gen_coreA_job(b, job, tag='', decode=True):
    if decode:
        b.raw(f"""
      s_cmp_lt_u32 s{job}, 256
      s_cbranch_scc0 L_j_notkv{tag}
      s_lshr_b32 s{J_MB}, s{job}, 5
      s_and_b32 s{J_NT}, s{job}, 31
      s_mov_b32 s{J_TYPE}, 0
      s_cmp_ge_u32 s{J_NT}, 16
      s_cselect_b32 s{J_TYPE}, 1, 0
      s_and_b32 s{J_NT}, s{J_NT}, 15
      s_branch L_j_dec{tag}
L_j_notkv{tag}:
      s_cmp_lt_u32 s{job}, 384
      s_cbranch_scc0 L_j_h{tag}
      s_sub_u32 s{G_T0}, s{job}, 256
      s_lshr_b32 s{J_MB}, s{G_T0}, 4
      s_and_b32 s{J_NT}, s{G_T0}, 15
      s_mov_b32 s{J_TYPE}, 2
      s_branch L_j_dec{tag}
L_j_h{tag}:
      s_sub_u32 s{G_T0}, s{job}, 384
      s_mul_i32 s{J_MB}, s{G_T0}, 1821
      s_lshr_b32 s{J_MB}, s{J_MB}, 16
      s_mul_i32 s{G_T1}, s{J_MB}, 36
      s_sub_u32 s{J_NT}, s{G_T0}, s{G_T1}
      s_mov_b32 s{J_TYPE}, 3
L_j_dec{tag}:
      s_mov_b32 s{J_WROW}, 0
      s_mov_b32 s{J_XROW}, 0
      s_mov_b32 s{J_XROW3}, 0x1000
        """)
    b.raw(f"""
      s_cmp_eq_u32 s{J_TYPE}, 3
      s_cselect_b32 s{J_HM}, 1, 0
      s_mov_b32 s{J_LDW}, 8192
      s_cselect_b32 s{J_LDW}, 9216, s{J_LDW}
      ; X srd
      s_mov_b32 s{G_XSRD}, s{P_AX}
      s_mov_b32 s{G_XSRD+1}, s{P_AX+1}
      s_mov_b32 s{G_XSRD+2}, {2048*1152}
      s_mov_b32 s{G_XSRD+3}, 0x00020000
      s_mov_b32 s{G_WSRD}, s{P_WK}
      s_mov_b32 s{G_WSRD+1}, s{P_WK+1}
      s_cmp_eq_u32 s{J_TYPE}, 1
      s_cselect_b32 s{G_WSRD}, s{P_WV}, s{G_WSRD}
      s_cselect_b32 s{G_WSRD+1}, s{P_WV+1}, s{G_WSRD+1}
      s_cmp_eq_u32 s{J_TYPE}, 2
      s_cselect_b32 s{G_WSRD}, s{P_WQ}, s{G_WSRD}
      s_cselect_b32 s{G_WSRD+1}, s{P_WQ+1}, s{G_WSRD+1}
      s_mov_b32 s{G_WSRD+2}, {576*8192}
      s_cmp_eq_u32 s{J_TYPE}, 3
      s_cbranch_scc0 L_j_nh{tag}
      s_cmp_lt_u32 s{G_W}, 2
      s_cselect_b32 s{G_WSRD}, s{P_WG}, s{P_WU}
      s_cselect_b32 s{G_WSRD+1}, s{P_WG+1}, s{P_WU+1}
      s_mov_b32 s{G_WSRD+2}, {576*9216}
L_j_nh{tag}:
      s_mov_b32 s{G_WSRD+3}, 0x00020000
      s_lshl_b32 s{G_T0}, s{J_MB}, 8
      s_lshl_b32 s{G_T1}, s{G_W}, 6
      s_add_u32 s{G_T0}, s{G_T0}, s{G_T1}
      s_mul_i32 s{G_XOFF}, s{G_T0}, {LDX}
      s_lshl_b32 s{G_M0}, s{G_W}, 13
      s_lshr_b32 s{G_T0}, s{G_W}, 1
      s_and_b32 s{G_T1}, s{G_W}, 1
      s_mul_i32 s{G_WOFF}, s{G_T1}, s{J_LDW}
      s_lshl_b32 s{G_WOFF}, s{G_WOFF}, 5
      s_lshl_b32 s{G_T2}, s{J_NT}, 9
      s_lshl_b32 s{G_T3}, s{G_T0}, 8
      s_add_u32 s{G_T2}, s{G_T2}, s{G_T3}
      s_lshl_b32 s{G_T3}, s{J_NT}, 8            ; 128nt*2
      s_cmp_eq_u32 s{J_HM}, 1
      s_cselect_b32 s{G_T2}, s{G_T3}, s{G_T2}
      s_add_u32 s{G_WOFF}, s{G_WOFF}, s{G_T2}
      s_lshl_b32 s{G_M0W}, s{G_T0}, 14
      s_lshl_b32 s{G_T1}, s{G_T1}, 13
      s_add_u32 s{G_M0W}, s{G_M0W}, s{G_T1}
      s_add_u32 s{G_M0W}, s{G_M0W}, 32768
      s_lshl_b32 s{G_LDW4}, s{J_LDW}, 2
      s_lshl_b32 s{G_WSTEP}, s{J_LDW}, 6
    """)
    a_setup_w(b, J_HM, J_LDW)
    b.raw(f"""
      v_and_b32 v1, 63, v0
      s_and_b32 s{G_T0}, s{G_W}, 1
      s_cmp_eq_u32 s{G_T0}, 0
      s_cbranch_scc0 L_j_tx{tag}
      s_mov_b32 s{G_TSRD}, s{G_WSRD}
      s_mov_b32 s{G_TSRD+1}, s{G_WSRD+1}
      s_mov_b32 s{G_TSRD+2}, s{G_WSRD+2}
      s_mov_b32 s{G_TSRD+3}, 0x00020000
      v_lshrrev_b32 v2, 2, v1
      v_mul_lo_u32 v2, v2, s{J_LDW}
      v_and_b32 v3, 3, v1
      v_lshlrev_b32 v3, 6, v3
      v_add_u32 v{VTCH}, v2, v3
      s_add_u32 s{G_T1}, s{J_WROW}, 128
      s_mul_i32 s{G_T1}, s{G_T1}, s{J_LDW}
      s_add_u32 s{G_TOFF}, s{G_WOFF}, s{G_T1}
      s_mov_b32 s{G_TSTEP}, s{G_WSTEP}
      s_branch L_j_td{tag}
L_j_tx{tag}:
      s_mov_b32 s{G_TSRD}, s{G_XSRD}
      s_mov_b32 s{G_TSRD+1}, s{G_XSRD+1}
      s_mov_b32 s{G_TSRD+2}, s{G_XSRD+2}
      s_mov_b32 s{G_TSRD+3}, 0x00020000
      v_lshrrev_b32 v2, 1, v1
      v_mul_u32_u24 v2, {LDX}, v2
      v_and_b32 v3, 1, v1
      v_lshlrev_b32 v3, 6, v3
      v_add_u32 v{VTCH}, v2, v3
      s_cmp_eq_u32 s{G_W}, 1
      s_cselect_b32 s{G_T1}, s{J_XROW}, s{J_XROW3}
      s_lshl_b32 s{G_T2}, s{J_MB}, 8
      s_add_u32 s{G_T1}, s{G_T1}, s{G_T2}
      s_mul_i32 s{G_TOFF}, s{G_T1}, {LDX}
      s_add_u32 s{G_TOFF}, s{G_TOFF}, 256
      s_mov_b32 s{G_TSTEP}, 128
L_j_td{tag}:
    """)
    b.raw(f"""
      s_cmp_eq_u32 s{J_TYPE}, 1
      s_cbranch_scc1 L_j_v{tag}
    """)
    a_mainloop(b, False, 'n' + tag)
    b.raw(f"""
      s_cmp_eq_u32 s{J_TYPE}, 3
      s_cbranch_scc1 L_j_eh{tag}
      s_lshr_b32 s{G_T0}, s{G_W}, 1
      s_lshl_b32 s{G_T0}, s{G_T0}, 2
      s_lshl_b32 s{G_T1}, s{J_MB}, 3
      s_add_u32 s{G_T0}, s{G_T0}, s{G_T1}
      s_mul_i32 s{G_T2}, s{G_T0}, {G_SEGSTR}
      s_and_b32 s{G_T0}, s{G_W}, 1
      s_lshl_b32 s{G_T1}, s{J_NT}, 1
      s_add_u32 s{G_T0}, s{G_T0}, s{G_T1}
      s_lshl_b32 s{G_T0}, s{G_T0}, 13
      s_add_u32 s{G_T2}, s{G_T2}, s{G_T0}
      s_cmp_eq_u32 s{J_TYPE}, 0
      s_mov_b32 s{G_T0}, {WS_QX}
      s_cselect_b32 s{G_T0}, {WS_KX}, s{G_T0}
      s_add_u32 s{G_T2}, s{G_T2}, s{G_T0}
    """)
    a_epi_kqv(b, False, True)
    b.raw(f"""
      s_branch L_j_done{tag}
L_j_eh{tag}:
      s_lshr_b32 s{G_T0}, s{G_W}, 1
      s_lshl_b32 s{G_T0}, s{G_T0}, 2
      s_lshl_b32 s{G_T1}, s{J_MB}, 3
      s_add_u32 s{G_T0}, s{G_T0}, s{G_T1}
      s_mul_i32 s{G_T0}, s{G_T0}, 144
      s_and_b32 s{G_T1}, s{G_W}, 1
      s_lshl_b32 s{G_T1}, s{G_T1}, 1
      s_lshl_b32 s{G_T2}, s{J_NT}, 2
      s_add_u32 s{G_T0}, s{G_T0}, s{G_T1}
      s_add_u32 s{G_T0}, s{G_T0}, s{G_T2}
      s_lshl_b32 s{G_T2}, s{G_T0}, 11
      s_add_u32 s{G_T2}, s{G_T2}, {WS_H}
    """)
    a_epi_h(b, True)
    b.raw(f"""
      s_branch L_j_done{tag}
L_j_v{tag}:
    """)
    a_mainloop(b, True, 'v' + tag)
    b.raw(f"""
      s_lshr_b32 s{G_T0}, s{G_W}, 1
      s_lshl_b32 s{G_T0}, s{G_T0}, 2
      s_lshl_b32 s{G_T1}, s{J_MB}, 3
      s_add_u32 s{G_T0}, s{G_T0}, s{G_T1}
      s_mul_i32 s{G_T2}, s{G_T0}, {G_SEGSTR}
      s_and_b32 s{G_T0}, s{G_W}, 1
      s_lshl_b32 s{G_T1}, s{J_NT}, 1
      s_add_u32 s{G_T0}, s{G_T0}, s{G_T1}
      s_lshl_b32 s{G_T0}, s{G_T0}, 13
      s_add_u32 s{G_T2}, s{G_T2}, s{G_T0}
      s_add_u32 s{G_T2}, s{G_T2}, {WS_VX}
    """)
    a_epi_kqv(b, True, True)
    b.raw(f"""
L_j_done{tag}:
      s_waitcnt vmcnt(0)
    """)

J_KS = 93
P_WD, P_WO, P_GW, P_OUT = 54, 56, 58, 60
def gen_coreB_job(b, kind, job, tag=''):
    NF = 144 if kind == 'down' else 128
    XB = WS_H if kind == 'down' else WS_O
    PW = P_WD if kind == 'down' else P_WO
    KROWS = 4608 if kind == 'down' else 4096
    split = kind == 'oprs'
    b.raw(f"""
      s_mul_i32 s{J_MB}, s{job}, 7282
      s_lshr_b32 s{J_MB}, s{J_MB}, 16
      s_mul_i32 s{G_T0}, s{J_MB}, 9
      s_sub_u32 s{J_NT}, s{job}, s{G_T0}
      s_mov_b32 s{G_XSRD}, s{G_OSRD}
      s_mov_b32 s{G_XSRD+1}, s{G_OSRD+1}
      s_mov_b32 s{G_XSRD+2}, 0x10000000
      s_mov_b32 s{G_XSRD+3}, 0x00020000
      s_mov_b32 s{G_WSRD}, s{PW}
      s_mov_b32 s{G_WSRD+1}, s{PW+1}
      s_mov_b32 s{G_WSRD+2}, {KROWS*1152}
      s_mov_b32 s{G_WSRD+3}, 0x00020000
      s_lshl_b32 s{G_T0}, s{J_MB}, 2
      s_add_u32 s{G_T0}, s{G_T0}, s{G_W}
      s_mul_i32 s{G_XOFF}, s{G_T0}, {NF*2048}
      s_add_u32 s{G_XOFF}, s{G_XOFF}, {XB}
      s_lshl_b32 s{G_M0}, s{G_W}, 12
      s_lshr_b32 s{G_T0}, s{G_W}, 1
      s_lshl_b32 s{G_T0}, s{G_T0}, 5
      s_and_b32 s{G_T1}, s{G_W}, 1
      s_lshl_b32 s{G_T1}, s{G_T1}, 3
      s_add_u32 s{G_T0}, s{G_T0}, s{G_T1}
      s_mul_i32 s{G_WOFF}, s{G_T0}, {LDWB}
      s_lshl_b32 s{G_T0}, s{J_NT}, 7
      s_add_u32 s{G_WOFF}, s{G_WOFF}, s{G_T0}
      s_lshl_b32 s{G_M0W}, s{G_W}, 11
      s_add_u32 s{G_M0W}, s{G_M0W}, 16384
      s_mov_b32 s{J_LDW}, {16 if split else KROWS // 64}
    """)
    if split:
        b.raw(f"""
      s_lshl_b32 s{G_T0}, s{J_KS}, 16
      s_add_u32 s{G_XOFF}, s{G_XOFF}, s{G_T0}
      s_mul_i32 s{G_T0}, s{J_KS}, {1024*LDWB}
      s_add_u32 s{G_WOFF}, s{G_WOFF}, s{G_T0}
        """)
    b_setup(b)
    b.raw(f"""
      v_and_b32 v1, 63, v0
      s_cmp_eq_u32 s{G_W}, 1
      s_cbranch_scc1 L_b_tw{tag}
      s_mov_b32 s{G_TSRD}, s{G_XSRD}
      s_mov_b32 s{G_TSRD+1}, s{G_XSRD+1}
      s_mov_b32 s{G_TSRD+2}, s{G_XSRD+2}
      s_mov_b32 s{G_TSRD+3}, 0x00020000
      s_mul_i32 s{G_T0}, s{J_NT}, 29
      v_add_u32 v2, s{G_T0}, v1              ; sigma
      v_lshrrev_b32 v3, 6, v2
      v_mul_u32_u24 v3, {NF*2048 // 16}, v3
      v_lshlrev_b32 v3, 4, v3
      v_and_b32 v4, 63, v2
      v_lshlrev_b32 v4, 6, v4
      v_add_u32 v3, v3, v4
      v_mov_b32 v5, 0x40000000
      v_cmp_gt_u32 vcc, 29, v1
      v_cndmask_b32 v3, v5, v3, vcc
      v_cmp_gt_u32 vcc, 256, v2
      v_cndmask_b32 v{BVTCH}, v5, v3, vcc
      s_lshl_b32 s{G_T0}, s{J_MB}, 2
      s_mul_i32 s{G_TOFF}, s{G_T0}, {NF*2048}
      s_add_u32 s{G_TOFF}, s{G_TOFF}, {XB + 4*4096}
      s_mov_b32 s{G_TSTEP}, 4096
      s_cmp_eq_u32 s{G_W}, 0
      s_cselect_b32 s{G_TOFF}, s{G_TOFF}, 0x40000000
      s_cselect_b32 s{G_TSTEP}, s{G_TSTEP}, 0
      s_branch L_b_td{tag}
L_b_tw{tag}:
      s_mov_b32 s{G_TSRD}, s{G_WSRD}
      s_mov_b32 s{G_TSRD+1}, s{G_WSRD+1}
      s_mov_b32 s{G_TSRD+2}, s{G_WSRD+2}
      s_mov_b32 s{G_TSRD+3}, 0x00020000
      v_lshrrev_b32 v2, 1, v1
      v_mul_u32_u24 v2, {LDWB}, v2
      v_and_b32 v3, 1, v1
      v_lshlrev_b32 v3, 6, v3
      v_add_u32 v{BVTCH}, v2, v3
      s_lshl_b32 s{G_T0}, s{J_WROW}, 5
      s_add_u32 s{G_T0}, s{G_T0}, {4*64}
      s_mul_i32 s{G_TOFF}, s{G_T0}, {LDWB}
      s_lshl_b32 s{G_T0}, s{J_NT}, 7
      s_add_u32 s{G_TOFF}, s{G_TOFF}, s{G_T0}
      s_mov_b32 s{G_TSTEP}, {64*LDWB}
L_b_td{tag}:
    """)
    b_mainloop(b, J_LDW, tag)
    OS = f's[{G_OSRD}:{G_OSRD+3}]'
    b.raw(f"""
      s_lshl_b32 s{G_T2}, s{job}, 15
      s_lshl_b32 s{G_T0}, s{G_W}, 13
      s_add_u32 s{G_T2}, s{G_T2}, s{G_T0}
      s_add_u32 s{G_T2}, s{G_T2}, {WS_B}
      v_and_b32 v1, 63, v0
      v_lshlrev_b32 v2, 4, v1
      s_add_u32 s{G_T3}, s{G_T2}, 4096
    """)
    if kind == 'down':
        b.raw('s_nop 15')
        for q in range(8):
            so = G_T2 if q < 4 else G_T3
            b.raw(f'buffer_store_dwordx4 a[{4*q}:{4*q+3}], v2, {OS}, s{so} offen offset:{(q & 3)*1024} sc1')
        b.raw('s_waitcnt vmcnt(0)')
        return
    if split:
        b.raw(f"""
      s_lshl_b32 s94, s{job}, 2
      s_add_u32 s95, s94, s{J_KS}
      s_lshl_b32 s95, s95, 15
      s_lshl_b32 s{G_T0}, s{G_W}, 13
      s_add_u32 s95, s95, s{G_T0}
      s_add_u32 s95, s95, {WS_PART}
      s_add_u32 s96, s95, 4096
      s_nop 7
        """)
        for q in range(8):
            so = 95 if q < 4 else 96
            b.raw(f'buffer_store_dwordx4 a[{4*q}:{4*q+3}], v2, {OS}, s{so} offen offset:{(q & 3)*1024} sc1')
        b.raw(f"""
      s_waitcnt vmcnt(0)
      s_barrier
      s_cmp_lg_u32 s{G_W}, 0
      s_cbranch_scc1 L_cmb_w{tag}
      s_lshl_b32 s97, s{job}, 2
      s_add_u32 s97, s97, {WS_FLAGS + 4*F_CNT}
      s_mov_b64 s[66:67], exec
      s_mov_b64 exec, 1
      v_mov_b32 v3, 0
      v_mov_b32 v4, 1
      buffer_atomic_add v4, v3, {OS}, s97 offen sc0 sc1
      s_waitcnt vmcnt(0)
      v_readfirstlane_b32 s97, v4
      s_mov_b64 exec, s[66:67]
      v_mov_b32 v3, 0x27000
      v_mov_b32 v4, s97
      ds_write_b32 v3, v4
      s_waitcnt lgkmcnt(0)
L_cmb_w{tag}:
      s_barrier
      v_mov_b32 v3, 0x27000
      ds_read_b32 v4, v3
      s_waitcnt lgkmcnt(0)
      v_readfirstlane_b32 s97, v4
      s_nop 3
      s_barrier
      s_cmp_eq_u32 s97, 3
      s_cbranch_scc0 L_cmb_done{tag}
        """)
    b.begin('oepi')
    e = b.e
    BV = 48
    for q in range(8):
        so = G_T2 if q < 4 else G_T3
        e(f'buffer_load_dwordx4 {R(BV+4*q)}, v2, {OS}, s{so} offen offset:{(q & 3)*1024}' + (' sc1' if split else ''))
    PV = 116
    if split:
        e(f's_lshl_b32 s95, s94, 15')
        e(f's_lshl_b32 s{G_T0}, s{G_W}, 13')
        e(f's_add_u32 s95, s95, s{G_T0}')
        e(f's_add_u32 s95, s95, {WS_PART}')
        for k in range(4):
            for q in range(8):
                if q % 4 == 0 and (k or q): e(f's_add_u32 s95, s95, {4096 if q == 4 else 32768 - 4096}')
                e(f'buffer_load_dwordx4 {R(PV + 32*k + 4*q)}, v2, {OS}, s95 offen offset:{(q & 3)*1024} sc1')
    e(f's_lshl_b32 s{G_T0}, s{J_MB}, 7')
    e(f's_lshr_b32 s{G_T1}, s{G_W}, 1')
    e(f's_lshl_b32 s{G_T1}, s{G_T1}, 6')
    e(f's_add_u32 s{G_T0}, s{G_T0}, s{G_T1}')
    e(f's_lshl_b32 s{G_T1}, s{G_T0}, 2')
    e(f's_add_u32 s{G_T1}, s{G_T1}, {WS_G}')
    e(f'v_and_b32 v3, 31, v1')
    e(f'v_lshlrev_b32 v4, 2, v3')
    sc = ' sc1' if split else ''
    e(f'buffer_load_dword v80, v4, {OS}, s{G_T1} offen{sc}')
    e(f'buffer_load_dword v81, v4, {OS}, s{G_T1} offen offset:128{sc}')
    e(f's_mov_b32 s{G_XSRD}, s{P_OUT}')
    e(f's_mov_b32 s{G_XSRD+1}, s{P_OUT+1}')
    e(f's_mov_b32 s{G_XSRD+2}, {2048*1152}')
    e(f'v_mul_u32_u24 v5, 1152, v3')
    e(f'v_lshrrev_b32 v6, 5, v1')
    e(f'v_lshlrev_b32 v6, 4, v6')
    e(f'v_add_u32 v5, v5, v6')
    e(f's_mul_i32 s{G_T0}, s{G_T0}, 1152')
    e(f's_lshl_b32 s{G_T1}, s{J_NT}, 7')
    e(f's_add_u32 s{G_T0}, s{G_T0}, s{G_T1}')
    e(f's_and_b32 s{G_T1}, s{G_W}, 1')
    e(f's_lshl_b32 s{G_T1}, s{G_T1}, 6')
    e(f's_add_u32 s{G_T0}, s{G_T0}, s{G_T1}')
    e(f's_add_u32 s{G_T1}, s{G_T0}, {32*1152}')
    for jt in range(2):
        g = 80 + jt
        T = 84 + 16*jt
        for r in range(16):
            x = 16*jt + r
            if split:
                e(f'v_add_f32 v{PV+x}, v{PV+x}, v{PV+32+x}')
                e(f'v_add_f32 v{PV+64+x}, v{PV+64+x}, v{PV+96+x}')
                e(f'v_add_f32 v{T+r}, v{PV+x}, v{PV+64+x}')
            else:
                e(f'v_accvgpr_read_b32 v{T+r}, a{x}')
            e(f'v_sub_f32 v{T+r}, v{T+r}, v{BV + x}')
            e(f'v_fma_f32 v{T+r}, v{T+r}, v{g}, v{BV + x}')
        for rq in range(4):
            e(f'v_cvt_pk_bf16_f32 v{T+2*rq}, v{T+4*rq}, v{T+4*rq+1}')
            e(f'v_cvt_pk_bf16_f32 v{T+2*rq+1}, v{T+4*rq+2}, v{T+4*rq+3}')
        for m in range(2):
            e(f'v_permlane32_swap_b32 v{T+4*m}, v{T+4*m+2}')
            e(f'v_permlane32_swap_b32 v{T+4*m+1}, v{T+4*m+3}')
            so = G_T0 if jt == 0 else G_T1
            e(f'buffer_store_dwordx4 {R(T+4*m)}, v5, s[{G_XSRD}:{G_XSRD+3}], s{so} offen offset:{32*m}')
    b.raw('s_waitcnt vmcnt(0)')
    if split: b.raw(f'L_cmb_done{tag}:')

def gen_gate_job(b, job, tag=''):
    b.raw(f"""
      s_mov_b32 s{G_XSRD}, s{P_AX}
      s_mov_b32 s{G_XSRD+1}, s{P_AX+1}
      s_mov_b32 s{G_XSRD+2}, {2048*1152}
      s_mov_b32 s{G_XSRD+3}, 0x00020000
      s_lshl_b32 s{G_T0}, s{job}, 8
      v_add_u32 v2, s{G_T0}, v0              ; token
      v_mul_u32_u24 v3, 1152, v2
      v_mov_b32 v4, 0
      s_mov_b32 s{G_K}, 0
L_gate{tag}:
      s_lshl_b32 s{G_T1}, s{G_K}, 6
      s_add_u32 s100, s{P_GW}, s{G_T1}
      s_addc_u32 s101, s{P_GW+1}, 0
      s_load_dwordx16 s[84:99], s[100:101], 0
      buffer_load_dwordx4 v[8:11], v3, s[{G_XSRD}:{G_XSRD+3}], s{G_T1} offen
      buffer_load_dwordx4 v[12:15], v3, s[{G_XSRD}:{G_XSRD+3}], s{G_T1} offen offset:16
      buffer_load_dwordx4 v[16:19], v3, s[{G_XSRD}:{G_XSRD+3}], s{G_T1} offen offset:32
      buffer_load_dwordx4 v[20:23], v3, s[{G_XSRD}:{G_XSRD+3}], s{G_T1} offen offset:48
      s_waitcnt vmcnt(0) lgkmcnt(0)
    """)
    for i in range(16): b.raw(f'v_dot2c_f32_bf16 v4, s{84+i}, v{8+i}')
    b.raw(f"""
      s_add_u32 s{G_K}, s{G_K}, 1
      s_cmp_lt_u32 s{G_K}, 18
      s_cbranch_scc1 L_gate{tag}
      v_mul_f32 v4, 0xbfb8aa3b, v4
      v_exp_f32 v4, v4
      s_nop 0
      v_add_f32 v4, 1.0, v4
      v_rcp_f32 v4, v4
      v_lshlrev_b32 v2, 2, v2
      s_mov_b32 s{G_T0}, {WS_G}
      s_nop 0
      buffer_store_dword v4, v2, s[{G_OSRD}:{G_OSRD+3}], s{G_T0} offen sc1
      s_waitcnt vmcnt(0)
    """)
```

```python
import sys
import chain as C
import gemm as Gm
from asmgen import *
from layout import *
from worker import *
from kernels import k_attn, k_oproj, kernel_text, desc, load_ptrs
from gemm import G_W, G_T0, G_T1, G_T2, G_T3, G_OSRD

D_TOTAL, D_CHAIN, D_CINIT, D_MIX = 8, 9, 10, 11
D_Q, D_KV, D_H, D_DQ = 16, 24, 32, 40
D_GT, D_T2 = 12, 13
from attn import gen_attn_unit
P_DBG = 62
BC = 0x27000

def one_lane(b, body):
    b.raw(f"s_mov_b64 s[66:67], exec\ns_mov_b64 exec, 1\n{body}\ns_mov_b64 exec, s[66:67]")
def atomic_add_ret(b, off, dst, val=1):
    one_lane(b, f"""
      v_mov_b32 v2, {off}
      v_mov_b32 v3, {val}
      global_atomic_add v4, v2, v3, s[{P_DBG}:{P_DBG+1}] sc0 sc1
      s_waitcnt vmcnt(0)
      v_readfirstlane_b32 s{dst}, v4""")
def load_dbg(b, off, dst):
    b.raw(f"""
      v_mov_b32 v2, {off}
      global_load_dword v4, v2, s[{P_DBG}:{P_DBG+1}] sc1
      s_waitcnt vmcnt(0)
      v_readfirstlane_b32 s{dst}, v4""")
def bcast(b, sreg, lab):
    b.raw(f"""
      v_mov_b32 v2, {BC}
      v_mov_b32 v3, s{sreg}
      ds_write_b32 v2, v3
      s_waitcnt lgkmcnt(0)
{lab}:
      s_barrier
      v_mov_b32 v2, {BC}
      ds_read_b32 v3, v2
      s_waitcnt lgkmcnt(0)
      v_readfirstlane_b32 s{sreg}, v3
      s_nop 3
      s_barrier""")

TS = False
def ts(b, idx, cond=None, vt=(2, 3), mode='store'):
    if not TS: return
    ts.n = getattr(ts, 'n', 0) + 1
    lab = f'L_ts{ts.n}'
    if cond: b.raw(f"s_cmp_lg_u32 s{cond[0]}, {cond[1]}\ns_cbranch_scc1 {lab}")
    op = {'store': 'global_store_dword', 'max': 'global_atomic_umax', 'min': 'global_atomic_umin'}[mode]
    b.raw(f"""
      s_memrealtime s[96:97]
      s_waitcnt lgkmcnt(0)
      s_mov_b64 s[98:99], exec
      s_mov_b64 exec, 1
      v_mov_b32 v{vt[0]}, {4*idx}
      v_mov_b32 v{vt[1]}, s96
      {op} v{vt[0]}, v{vt[1]}, s[{P_DBG}:{P_DBG+1}] sc1
      s_waitcnt vmcnt(0)
      s_mov_b64 exec, s[98:99]
{lab}:""")

OSRD = f's[{G_OSRD}:{G_OSRD+3}]'
def flag_add(b, off_sreg):
    one_lane(b, f"""
      v_mov_b32 v2, 0
      v_mov_b32 v3, 1
      buffer_atomic_add v3, v2, {OSRD}, s{off_sreg} offen sc1
      s_waitcnt vmcnt(0)""")
def flag_wait(b, off_sreg, target, lab, tmp=80, cnt=79):
    b.raw(f"""
      s_mov_b32 s{cnt}, 0
{lab}:
      v_mov_b32 v2, 0
      buffer_load_dword v4, v2, {OSRD}, s{off_sreg} offen sc1
      s_waitcnt vmcnt(0)
      v_readfirstlane_b32 s{tmp}, v4
      s_cmp_ge_u32 s{tmp}, {target}
      s_cbranch_scc1 {lab}_ok
      s_sleep 8
      s_add_u32 s{cnt}, s{cnt}, 1
      s_cmp_lt_u32 s{cnt}, 400000
      s_cbranch_scc1 {lab}
{lab}_ok:""")
def cinit_wait(b, lab):
    b.raw(f"""
      s_mov_b32 s79, 0
{lab}:""")
    load_dbg(b, 4*D_CINIT, 80)
    b.raw(f"""
      s_cmp_ge_u32 s80, 32
      s_cbranch_scc1 {lab}_ok
      s_sleep 8
      s_add_u32 s79, s79, 1
      s_cmp_lt_u32 s79, 400000
      s_cbranch_scc1 {lab}
{lab}_ok:""")

def gen_roles(b):
    b.raw(f"""
      s_getreg_b32 s68, hwreg(HW_REG_XCC_ID, 0, 4)
      s_and_b32 s68, s68, 7
      s_cmp_lg_u32 s{G_W}, 0
      s_cbranch_scc1 L_role_wait
      s_cmp_eq_u32 s68, 0
      s_cbranch_scc0 L_role_other""")
    atomic_add_ret(b, 4*D_CHAIN, 69)
    atomic_add_ret(b, 4*D_TOTAL, 70)
    b.raw("s_branch L_role_have\nL_role_other:")
    atomic_add_ret(b, 4*D_TOTAL, 70)
    load_dbg(b, 4*D_CHAIN, 69)
    b.raw(f"""
      s_sub_u32 s71, 255, s70
      s_add_u32 s71, s71, s69
      s_mov_b32 s69, 1000
      s_cmp_lt_u32 s71, 32
      s_cbranch_scc0 L_role_have""")
    atomic_add_ret(b, 4*D_CHAIN, 69)
    b.raw("L_role_have:")
    bcast(b, 69, 'L_role_wait')
    b.raw("s_cmp_lt_u32 s69, 32\ns_cbranch_scc1 L_chain")

def gen_worker(b):
    b.raw(f"""
      s_sub_u32 s72, s68, 1
      s_cmp_eq_u32 s68, 0
      s_cselect_b32 s72, 0, s72
      s_mov_b32 s73, 0""")
    Gm.a_setup(b)
    b.raw(f"""
L_wq_next:
      s_cmp_lg_u32 s{G_W}, 0
      s_cbranch_scc1 L_wq_wait
      s_add_u32 s74, s72, {D_Q}
      s_lshl_b32 s74, s74, 2""")
    atomic_add_ret(b, 's74', 75)
    bcast(b, 75, 'L_wq_wait')
    b.raw(f"""
      s_cmp_lt_u32 s75, 96
      s_cbranch_scc1 L_wq_job
      s_add_u32 s72, s72, 1
      s_cmp_eq_u32 s72, 7
      s_cselect_b32 s72, 0, s72
      s_add_u32 s73, s73, 1
      s_cmp_lt_u32 s73, 7
      s_cbranch_scc1 L_wq_next
      s_branch L_wd_start
L_wq_job:
      s_lshr_b32 s76, s75, 5
      s_mul_i32 s76, s76, 7
      s_add_u32 s76, s76, s72           ; group
      s_and_b32 s77, s75, 31            ; r
      s_lshr_b32 s78, s77, 3
      s_and_b32 s79, s77, 7
      s_cmp_lt_u32 s76, 8
      s_cbranch_scc0 L_wq_notkv
      s_lshr_b32 s{G_T0}, s76, 2
      s_lshl_b32 s{G_T0}, s{G_T0}, 2
      s_add_u32 s{J_MB}, s{G_T0}, s78
      s_and_b32 s{G_T0}, s76, 3
      s_lshl_b32 s{G_T0}, s{G_T0}, 3
      s_add_u32 s{J_NT}, s{G_T0}, s79
      s_cmp_ge_u32 s{J_NT}, 16
      s_cselect_b32 s{J_TYPE}, 1, 0
      s_and_b32 s{J_NT}, s{J_NT}, 15
      s_branch L_wq_dec
L_wq_notkv:
      s_cmp_lt_u32 s76, 12
      s_cbranch_scc0 L_wq_h
      s_sub_u32 s{G_T1}, s76, 8
      s_lshr_b32 s{G_T0}, s{G_T1}, 1
      s_lshl_b32 s{G_T0}, s{G_T0}, 2
      s_add_u32 s{J_MB}, s{G_T0}, s78
      s_and_b32 s{G_T0}, s{G_T1}, 1
      s_lshl_b32 s{G_T0}, s{G_T0}, 3
      s_add_u32 s{J_NT}, s{G_T0}, s79
      s_mov_b32 s{J_TYPE}, 2
      s_branch L_wq_dec
L_wq_h:
      s_mov_b32 s{J_TYPE}, 3
      s_cmp_eq_u32 s76, 20
      s_cbranch_scc1 L_wq_h20
      s_sub_u32 s{G_T1}, s76, 12
      s_lshr_b32 s{G_T0}, s{G_T1}, 2
      s_lshl_b32 s{G_T0}, s{G_T0}, 2
      s_add_u32 s{J_MB}, s{G_T0}, s78
      s_and_b32 s{G_T0}, s{G_T1}, 3
      s_lshl_b32 s{G_T0}, s{G_T0}, 3
      s_add_u32 s{J_NT}, s{G_T0}, s79
      s_branch L_wq_dec
L_wq_h20:
      s_lshr_b32 s{J_MB}, s77, 2
      s_and_b32 s{J_NT}, s77, 3
      s_lshl_b32 s{J_WROW}, s{J_MB}, 3
      s_lshl_b32 s{J_XROW}, s{J_NT}, 6
      s_add_u32 s{J_XROW3}, s{J_XROW}, 32
      s_add_u32 s{J_NT}, s{J_NT}, 32
      s_branch L_wq_dec2
L_wq_dec:
      s_lshl_b32 s{J_WROW}, s78, 4
      s_lshl_b32 s{J_XROW}, s79, 5
      s_mov_b32 s{J_XROW3}, 0x1000
L_wq_dec2:""")
    gen_coreA_job(b, None, tag='w', decode=False)
    b.raw(f"""
      s_barrier
      s_cmp_lg_u32 s{G_W}, 0
      s_cbranch_scc1 L_wq_next
      s_cmp_eq_u32 s{J_TYPE}, 2
      s_cbranch_scc1 L_wq_qsig
      s_mov_b32 s74, {D_KV}
      s_cmp_eq_u32 s{J_TYPE}, 3
      s_cselect_b32 s74, {D_H}, s74
      s_add_u32 s74, s74, s{J_MB}
      s_lshl_b32 s74, s74, 2""")
    one_lane(b, f"""
      v_mov_b32 v2, s74
      v_mov_b32 v3, 1
      global_atomic_add v2, v3, s[{P_DBG}:{P_DBG+1}] sc1
      s_waitcnt vmcnt(0)""")
    b.raw("s_branch L_wq_next\nL_wq_qsig:")
    cinit_wait(b, 'L_wq_ci')
    b.raw(f"s_lshl_b32 s74, s{J_MB}, 2\ns_add_u32 s74, s74, {WS_FLAGS + 4*F_QR}")
    flag_add(b, 74)
    b.raw(f"""
      s_branch L_wq_next
L_wd_start:""")
    ts(b, 52, cond=(G_W, 0), mode='max')
    b.raw(f"s_cmp_lg_u32 s{G_W}, 0\ns_cbranch_scc1 L_gt_wait")
    cinit_wait(b, 'L_gt_ci')
    atomic_add_ret(b, 4*D_GT, 77)
    bcast(b, 77, 'L_gt_wait')
    b.raw("s_cmp_lt_u32 s77, 8\ns_cbranch_scc0 L_gt_skip")
    gen_gate_job(b, 77, tag='k1')
    b.raw(f"s_barrier\ns_cmp_lg_u32 s{G_W}, 0\ns_cbranch_scc1 L_gt_skip\ns_mov_b32 s74, {WS_FLAGS + 4*F_GATE}")
    flag_add(b, 74)
    b.raw("L_gt_skip:")
    b.raw(f"""
      s_sub_u32 s72, s68, 1
      s_cmp_eq_u32 s68, 0
      s_cselect_b32 s72, 0, s72
      s_mov_b32 s73, 0
L_wd_next:
      s_cmp_lg_u32 s{G_W}, 0
      s_cbranch_scc1 L_wd_wait
      s_add_u32 s74, s72, {D_DQ}
      s_lshl_b32 s74, s74, 2""")
    atomic_add_ret(b, 's74', 75)
    b.raw(f"""
      s_mul_i32 s76, s75, 7282
      s_lshr_b32 s76, s76, 16           ; k = t/9 (t small)
      s_mul_i32 s77, s76, 7
      s_add_u32 s77, s77, s72           ; block
      s_cmp_lt_u32 s75, 27
      s_cselect_b32 s77, s77, 99
      s_cmp_lt_u32 s77, 16
      s_cbranch_scc1 L_wd_valid
      s_mov_b32 s77, 0xffff
      s_branch L_wd_pub
L_wd_valid:
      s_lshr_b32 s78, s77, 1
      s_add_u32 s78, s78, {D_H}
      s_lshl_b32 s78, s78, 2
      s_mov_b32 s79, 0
L_wd_poll:""")
    load_dbg(b, 's78', 80)
    b.raw(f"""
      s_cmp_ge_u32 s80, 36
      s_cbranch_scc1 L_wd_ready
      s_sleep 16
      s_add_u32 s79, s79, 1
      s_cmp_lt_u32 s79, 400000
      s_cbranch_scc1 L_wd_poll
L_wd_ready:
      s_mul_i32 s78, s76, 9
      s_sub_u32 s78, s75, s78
      s_mul_i32 s77, s77, 9
      s_add_u32 s77, s77, s78
L_wd_pub:""")
    bcast(b, 77, 'L_wd_wait')
    b.raw(f"""
      s_cmp_lt_u32 s77, 144
      s_cbranch_scc1 L_wd_job
      s_add_u32 s72, s72, 1
      s_cmp_eq_u32 s72, 7
      s_cselect_b32 s72, 0, s72
      s_add_u32 s73, s73, 1
      s_cmp_lt_u32 s73, 7
      s_cbranch_scc1 L_wd_next
      s_branch L_t2_next
L_wd_job:
      s_mul_i32 s{J_WROW}, s77, 7282
      s_lshr_b32 s{J_WROW}, s{J_WROW}, 16
      s_cmp_ge_u32 s{J_WROW}, 7
      s_cselect_b32 s{J_WROW}, 1, 0""")
    gen_coreB_job(b, 'down', 77, tag='wd')
    b.raw(f"""
      s_barrier
      s_cmp_lg_u32 s{G_W}, 0
      s_cbranch_scc1 L_wd_next
      s_lshl_b32 s74, s{J_MB}, 2
      s_add_u32 s74, s74, {WS_FLAGS + 4*F_DN}""")
    flag_add(b, 74)
    b.raw("s_branch L_wd_next")
    b.raw(f"""
L_t2_next:
      s_cmp_lg_u32 s{G_W}, 0
      s_cbranch_scc1 L_t2_wait""")
    atomic_add_ret(b, 4*D_T2, 75)
    b.raw(f"""
      s_cmp_ge_u32 s75, {16*68}
      s_cbranch_scc1 L_t2_pub
      s_mul_i32 s76, s75, 964
      s_lshr_b32 s76, s76, 16
      s_mul_i32 s77, s76, 68
      s_sub_u32 s77, s75, s77           ; r
      s_cmp_lt_u32 s77, 32
      s_cbranch_scc0 L_t2_wopr
      s_lshr_b32 s78, s77, 3
      s_lshl_b32 s74, s76, 2
      s_add_u32 s78, s78, s74
      s_lshl_b32 s74, s78, 2
      s_add_u32 s74, s74, {WS_FLAGS + 4*F_SEG}""")
    flag_wait(b, 74, 32, 'L_t2_w1')
    b.raw(f"s_lshr_b32 s74, s76, 1\ns_lshl_b32 s74, s74, 2\ns_add_u32 s74, s74, {WS_FLAGS + 4*F_QR}")
    flag_wait(b, 74, 16, 'L_t2_w2')
    b.raw(f"""
      s_branch L_t2_pub
L_t2_wopr:
      s_sub_u32 s78, s77, 32
      s_and_b32 s78, s78, 3
      s_lshl_b32 s74, s76, 2
      s_add_u32 s74, s74, s78
      s_lshl_b32 s74, s74, 2
      s_add_u32 s74, s74, {WS_FLAGS + 4*F_ATT}""")
    flag_wait(b, 74, 8, 'L_t2_w3')
    b.raw(f"s_lshl_b32 s74, s76, 2\ns_add_u32 s74, s74, {WS_FLAGS + 4*F_DN}")
    flag_wait(b, 74, 9, 'L_t2_w4')
    b.raw(f"s_mov_b32 s74, {WS_FLAGS + 4*F_GATE}")
    flag_wait(b, 74, 8, 'L_t2_w5')
    b.raw("L_t2_pub:")
    bcast(b, 75, 'L_t2_wait')
    b.raw(f"""
      s_cmp_ge_u32 s75, {16*68}
      s_cbranch_scc1 L_worker_end
      s_mul_i32 s76, s75, 964
      s_lshr_b32 s76, s76, 16
      s_mul_i32 s77, s76, 68
      s_sub_u32 s77, s75, s77
      s_cmp_lt_u32 s77, 32
      s_cbranch_scc0 L_t2_opr
      s_lshr_b32 s81, s77, 3
      s_lshl_b32 s82, s76, 2
      s_add_u32 s81, s81, s82
      s_and_b32 s82, s77, 7
      s_lshl_b32 s82, s82, 2
      s_add_u32 s82, s82, s{G_W}""")
    gen_attn_unit(b, 81, 82, tag='k1', sc1=True)
    b.raw(f"""
      s_barrier
      s_cmp_lg_u32 s{G_W}, 0
      s_cbranch_scc1 L_t2_next
      s_and_b32 s78, s77, 7
      s_lshr_b32 s78, s78, 1
      s_lshl_b32 s74, s76, 2
      s_add_u32 s74, s74, s78
      s_lshl_b32 s74, s74, 2
      s_add_u32 s74, s74, {WS_FLAGS + 4*F_ATT}""")
    flag_add(b, 74)
    b.raw(f"""
      s_branch L_t2_next
L_t2_opr:
      s_sub_u32 s78, s77, 32
      s_and_b32 s{J_KS}, s78, 3
      s_lshr_b32 s78, s78, 2            ; nt
      s_mul_i32 s77, s76, 9
      s_add_u32 s77, s77, s78
      s_mov_b32 s{J_WROW}, 0""")
    gen_coreB_job(b, 'oprs', 77, tag='k1o')
    b.raw("s_barrier\ns_branch L_t2_next")

def gen_chain_prologue(b):
    S = C
    b.raw(f"""
L_chain:
      s_load_dwordx2 s[74:75], s[0:1], 8          ; mem0
      s_mov_b32 s{S.S_WS}, s{G_OSRD}
      s_mov_b32 s{S.S_WS+1}, s{G_OSRD+1}
      s_mov_b32 s{S.S_WS+2}, 0x10000000
      s_mov_b32 s{S.S_WS+3}, 0x00020000
      s_mov_b32 s76, s{P_WQ}
      s_mov_b32 s77, s{P_WQ+1}
      s_mov_b32 s78, s{P_WK}
      s_mov_b32 s79, s{P_WK+1}
      s_mov_b32 s80, s{P_WV}
      s_mov_b32 s81, s{P_WV+1}
      s_mov_b32 s82, s{P_WO}
      s_mov_b32 s83, s{P_WO+1}
      s_mov_b32 s{S.S_H}, s69
      s_waitcnt lgkmcnt(0)""")
    ts(b, 54, cond=(G_W, 0), vt=(20, 21), mode='max')
    S.gen_setup(b)
    b.raw(f"s_cmp_lg_u32 s{S.S_W}, 0\ns_cbranch_scc1 L_cp_nomix\ns_lshl_b32 s73, 1, s68")
    one_lane(b, f"""
      v_mov_b32 v20, {4*D_MIX}
      v_mov_b32 v21, s73
      global_atomic_or v20, v21, s[{P_DBG}:{P_DBG+1}] sc1""")
    b.raw("L_cp_nomix:")
    b.raw(f"""
      v_mov_b32 v20, -1
      v_mov_b32 v21, -1
      v_mov_b32 v22, -1
      v_mov_b32 v23, -1
      s_mul_i32 s{S.S_T0}, s{S.S_H}, 9216
      s_add_u32 s{S.S_T0}, s{S.S_T0}, {WS_INBOX}
      s_lshl_b32 s{S.S_T1}, s{S.S_W}, 10
      s_add_u32 s{S.S_T0}, s{S.S_T0}, s{S.S_T1}""")
    for sl in range(2):
        for i in range(3):
            if i < 2:
                b.raw(f"s_add_u32 s{S.S_T2}, s{S.S_T0}, {sl*0x80000 + i*4096}")
            else:
                b.raw(f"s_sub_u32 s{S.S_T2}, s{S.S_T0}, s{S.S_T1}\ns_add_u32 s{S.S_T2}, s{S.S_T2}, {sl*0x80000 + 8192}")
            b.raw(f"buffer_store_dwordx4 v[20:23], v{S.L16}, {S.SRD}, s{S.S_T2} offen sc1")
    b.raw(f"""
      s_cmp_eq_u32 s{S.S_H}, 31
      s_cbranch_scc0 L_cp_noflags
      v_mov_b32 v24, 0
      v_mov_b32 v25, 0
      v_mov_b32 v26, 0
      v_mov_b32 v27, 0
      s_lshl_b32 s{S.S_T2}, s{S.S_W}, 10
      s_add_u32 s{S.S_T2}, s{S.S_T2}, {WS_FLAGS}
      buffer_store_dwordx4 v[24:27], v{S.L16}, {S.SRD}, s{S.S_T2} offen sc1
L_cp_noflags:""")
    b.raw(f"""
      s_cmp_lg_u32 s{S.S_W}, 0
      s_cbranch_scc1 L_cp_img_done
      s_cmp_lt_u32 s{S.S_H}, 9
      s_cbranch_scc1 L_cp_img0
      s_cmp_ge_u32 s{S.S_H}, 27
      s_cbranch_scc1 L_cp_img_done
      s_lshl_b32 s{S.S_T2}, s{S.S_H}, 10
      s_add_u32 s{S.S_T2}, s{S.S_T2}, {WS_IMG}
      buffer_store_dwordx4 v[20:23], v{S.L16}, {S.SRD}, s{S.S_T2} offen sc1
      s_branch L_cp_img_done
L_cp_img0:
      s_mov_b32 s84, s74
      s_mov_b32 s85, s75
      s_mov_b32 s86, 9216
      s_mov_b32 s87, 0x00020000
      v_lshrrev_b32 v24, 1, v13
      v_mul_u32_u24 v24, 1152, v24
      v_lshlrev_b32 v25, 3, v12               ; 4ga*2
      v_and_b32 v26, 1, v13
      v_lshlrev_b32 v26, 2, v26               ; 2half*2
      v_add3_u32 v24, v24, v25, v26
      s_lshl_b32 s{S.S_T2}, s{S.S_H}, 7       ; 64c*2
      s_cmp_eq_u32 s{S.S_H}, 8
      s_cbranch_scc1 L_cp_img8""")
    for s in range(8):
        b.raw(f"buffer_load_ushort v{32 + s}, v24, s[84:87], s{S.S_T2} offen offset:{(16*(s & 3) + (s >> 2))*2}")
    b.raw("s_branch L_cp_img_st\nL_cp_img8:")
    for s in range(8):
        b.raw(f"buffer_load_ushort v{32 + s}, v24, s[84:87], s{S.S_T2} offen offset:{(16*(s >> 1) + (s & 1))*2}")
    b.raw(f"""
L_cp_img_st:
      s_lshl_b32 s{S.S_T2}, s{S.S_H}, 10
      s_add_u32 s{S.S_T2}, s{S.S_T2}, {WS_IMG}
      s_waitcnt vmcnt(0)
      v_lshl_or_b32 v28, v33, 16, v32
      v_lshl_or_b32 v29, v35, 16, v34
      v_lshl_or_b32 v30, v37, 16, v36
      v_lshl_or_b32 v31, v39, 16, v38
      buffer_store_dwordx4 v[28:31], v{S.L16}, {S.SRD}, s{S.S_T2} offen sc1
L_cp_img_done:
      s_waitcnt vmcnt(0)
      s_barrier
      s_cmp_lg_u32 s{S.S_W}, 0
      s_cbranch_scc1 L_cp_noinit""")
    one_lane(b, f"""
      v_mov_b32 v20, {4*D_CINIT}
      v_mov_b32 v21, 1
      global_atomic_add v20, v21, s[{P_DBG}:{P_DBG+1}] sc1""")
    b.raw("L_cp_noinit:")
    ts(b, 55, cond=(C.S_W, 0), vt=(20, 21), mode='max')
    gen_weights(b)
    ts(b, 49, cond=(C.S_W, 0), vt=(20, 21), mode='max')
    b.raw(f"""
      s_cmp_lg_u32 s{S.S_W}, 0
      s_cbranch_scc1 L_cp_w2
      s_mov_b32 s{S.S_CNT}, 0
L_cp_poll:
      v_mov_b32 v20, {4*D_CINIT}
      v_mov_b32 v21, {4*D_KV}
      global_load_dwordx2 v[22:23], v20, s[{P_DBG}:{P_DBG+1}] sc1
      global_load_dword v24, v21, s[{P_DBG}:{P_DBG+1}] sc1
      s_waitcnt vmcnt(0)
      v_readfirstlane_b32 s73, v22
      v_readfirstlane_b32 s72, v23
      v_readfirstlane_b32 s71, v24
      s_add_u32 s{S.S_CNT}, s{S.S_CNT}, 1
      s_cmp_gt_u32 s{S.S_CNT}, 400000
      s_cbranch_scc1 L_cp_go
      s_cmp_lt_u32 s73, 32
      s_cbranch_scc1 L_cp_again
      s_cmp_ge_u32 s71, 32
      s_cbranch_scc1 L_cp_go
L_cp_again:
      s_sleep 4
      s_branch L_cp_poll
L_cp_go:
      v_mov_b32 v20, 0
      v_mov_b32 v21, s72
      ds_write_b32 v20, v21 offset:{C.LDS_DUMP}
      s_waitcnt lgkmcnt(0)
L_cp_w2:
      s_barrier
      v_mov_b32 v20, 0
      ds_read_b32 v21, v20 offset:{C.LDS_DUMP}
      s_waitcnt lgkmcnt(0)
      v_readfirstlane_b32 s72, v21
      s_nop 3
      s_barrier""")
    ts(b, 50, cond=(C.S_W, 0), vt=(20, 21), mode='max')
    S.gen_kxvx(b, nxt=False)
    for a in S.AQ + S.AK: S.zero(b.raw, a)
    S.gen_gprep(b)
    S.gen_gissue(b, '', 0)
    b.raw(f"""
      s_sub_u32 s73, s72, 1
      s_and_b32 s73, s73, s72
      s_cmp_eq_u32 s73, 0
      s_cbranch_scc0 L_steps""")

def gen_weights(b):
    S = C
    NP = 8
    reg_pairs = [(('q0', p), ('q1', p)) for p in range(9)] + [(('k0', p), ('k1', p)) for p in (0, 2, 4, 6, 8)] + \
                [(('v0', c), ('v1', c)) for c in range(9)] + [(('o%d' % i, 0), ('o%d' % (i + 1), 0)) for i in (0, 2, 4, 6)]
    lds_pairs = {}
    for a, bb in [(('k0', p), ('k1', p)) for p in (1, 3, 5, 7)] + [(('o%d' % i, 1), ('o%d' % (i + 1), 1)) for i in (0, 2, 4, 6)]:
        assert S.PLACE[a][0] == 'l' and S.PLACE[bb][1] == S.PLACE[a][1] + 1 and S.PLACE[a][1] % 2 == 0
        lds_pairs[S.PLACE[a][1] // 2] = (a, bb)
    seq = list(reg_pairs)
    assert len(seq) == 27
    for P in range(27, 35): seq.append(lds_pairs[P % NP])
    b.raw(f"""
      v_lshrrev_b32 v25, 4, v11              ; gb
      v_bfe_u32 v26, v11, 2, 2               ; r
      v_and_b32 v27, 3, v11                  ; pos
      v_lshrrev_b32 v28, 1, v25              ; gb>>1
      v_and_b32 v29, 1, v25                  ; gb&1
      v_lshrrev_b32 v30, 1, v26              ; r>>1
      v_and_b32 v31, 1, v26                  ; r&1
      v_lshlrev_b32 v32, 1, v29
      v_xor_b32 v27, v27, v32
      v_lshlrev_b32 v27, 4, v27
      ; qkv c<8: 4(gb>>1) + (gb&1) + 16(r&1) + 2(r>>1)
      v_lshlrev_b32 v32, 2, v28
      v_add_u32 v32, v32, v29
      v_lshl_add_u32 v32, v31, 4, v32
      v_lshl_add_u32 v32, v30, 1, v32
      v_lshlrev_b32 v32, 13, v32
      v_add_u32 v20, v32, v27
      ; qkv c=8: 32(gb&1) + 4(gb>>1) + r
      v_lshlrev_b32 v32, 5, v29
      v_lshl_add_u32 v32, v28, 2, v32
      v_add_u32 v32, v32, v26
      v_lshlrev_b32 v32, 13, v32
      v_add_u32 v21, v32, v27
      v_lshlrev_b32 v32, 4, v28
      v_lshl_add_u32 v32, v29, 2, v32
      v_lshl_add_u32 v32, v30, 3, v32
      v_add_u32 v32, v32, v31
      v_mul_u32_u24 v32, 1152, v32
      v_add_u32 v22, v32, v27
      s_mul_i32 s88, s{S.S_W}, {S.W_PER_WAVE}
      s_add_u32 s88, s88, {S.LDS_W}
      v_lshlrev_b32 v23, 8, v25
      v_lshl_add_u32 v23, v26, 6, v23
      v_lshl_add_u32 v23, v29, 5, v23
      v_and_b32 v32, 3, v11
      v_lshl_add_u32 v23, v32, 3, v23
      v_add_u32 v23, s88, v23
      v_xor_b32 v24, 32, v23
      v_lshrrev_b32 v35, 5, v11              ; hi5
      v_bfe_u32 v36, v11, 3, 2               ; gb'
      v_bfe_u32 v37, v11, 1, 2               ; r''
      v_and_b32 v38, 1, v11
      v_lshlrev_b32 v38, 4, v38
      v_lshlrev_b32 v33, 1, v35
      v_lshrrev_b32 v39, 1, v36
      v_lshl_add_u32 v33, v39, 4, v33
      v_and_b32 v39, 1, v36
      v_lshl_add_u32 v33, v39, 2, v33
      v_lshrrev_b32 v39, 1, v37
      v_lshl_add_u32 v33, v39, 3, v33
      v_and_b32 v39, 1, v37
      v_add_u32 v33, v33, v39
      v_mul_u32_u24 v33, 1152, v33
      v_add_u32 v33, v33, v38
      v_lshlrev_b32 v34, 3, v11
      v_add_u32 v34, s88, v34
      s_lshl_b32 s89, s{S.S_H}, 8
      s_lshl_b32 s90, s{S.S_W}, 6
      s_add_u32 s89, s89, s90                 ; qkv column base bytes
      s_mul_i32 s90, s{S.S_H}, {128*1152}
      s_mov_b32 s86, {576*8192}
      s_mov_b32 s87, 0x00020000
      s_mov_b32 s94, {4096*1152}
      s_mov_b32 s95, 0x00020000
      s_mov_b32 s92, s82
      s_mov_b32 s93, s83""")
    cur_mat = [None]
    def dma(P):
        (name, c), _ = seq[P]
        slot = (P % NP) * 4096
        if name[0] in 'qkv':
            if cur_mat[0] != name[0]:
                src = {'q': 76, 'k': 78, 'v': 80}[name[0]]
                b.raw(f"s_mov_b32 s84, s{src}\ns_mov_b32 s85, s{src+1}")
                cur_mat[0] = name[0]
            if c == 8:
                b.raw(f"s_add_u32 s91, s89, {512*8192}"); vo = 21
                rows = [16*(io & 1) + 8*(io >> 1) for io in range(4)]
            else:
                vo = 20
                rows = [32*(io & 1) + 8*(io >> 1) for io in range(4)]
                if name[0] == 'v':
                    b.raw(f"s_add_u32 s91, s89, {64*c*8192}")
                else:
                    d = DELTA[c]
                    b.raw(f"s_xor_b32 s91, s{S.S_W}, {d & 3}\ns_or_b32 s91, s91, {d & 4}\ns_lshl_b32 s91, s91, 19\ns_add_u32 s91, s91, s89")
            srd = 's[84:87]'; stride = 8192
        else:
            i = int(name[1:]); vo = 22
            b.raw(f"s_lshl_b32 s91, s{S.S_W}, 8\ns_add_u32 s91, s91, {32*i + 64*c*1152}\ns_add_u32 s91, s91, s90")
            rows = [32*(io >> 1) + 2*(io & 1) for io in range(4)]
            srd = 's[92:95]'; stride = 1152
        for io in range(4):
            b.raw(f"s_add_u32 m0, s88, {slot + io*1024}\ns_add_u32 s97, s91, {rows[io]*stride}\nbuffer_load_dwordx4 v{vo}, {srd}, s97 offen lds")
    def single_dma(c2):
        b.raw(f"s_lshl_b32 s91, s{S.S_W}, 5\ns_add_u32 s91, s91, {1024 + 64*c2*1152}\ns_add_u32 s91, s91, s90")
        for io in range(2):
            b.raw(f"s_add_u32 m0, s88, {16*2048 + io*1024}\ns_add_u32 s97, s91, {io*32*1152}\nbuffer_load_dwordx4 v33, s[92:95], s97 offen lds")
    def single_fin(c2):
        pl = S.PLACE[('o8', c2)]
        for u in range(4):
            dst = f'v[{40+2*u}:{41+2*u}]' if pl[0] == 'l' else f'{pl[0]}[{pl[1]+2*u}:{pl[1]+2*u+1}]'
            b.raw(f"ds_read_b64_tr_b16 {dst}, v34 offset:{16*2048 + u*512}")
        b.raw("s_waitcnt lgkmcnt(0)")
        if pl[0] == 'l':
            b.raw(f"ds_write_b128 v{S.WBASE}, v[40:43] offset:{16*2048}\nds_write_b128 v{S.WBASE}, v[44:47] offset:{16*2048+1024}")
    single_dma(0)
    for P in range(NP): dma(P)
    b.raw(f"s_waitcnt vmcnt({4*NP})")
    single_fin(0)
    single_dma(1)
    N = len(seq)
    for P in range(N):
        issued = min(N, P + NP)
        younger = 4 * (issued - (P + 1)) + (2 if P < NP else 0)
        b.raw(f"s_waitcnt vmcnt({younger})")
        slot = (P % NP) * 4096
        for t, o in enumerate(seq[P]):
            pl = S.PLACE[o]
            for u in range(4):
                dst = f'v[{40+8*t+2*u}:{41+8*t+2*u}]' if pl[0] == 'l' else f'{pl[0]}[{pl[1]+2*u}:{pl[1]+2*u+1}]'
                b.raw(f"ds_read_b64_tr_b16 {dst}, v{23+t} offset:{slot + u*1024}")
        b.raw("s_waitcnt lgkmcnt(0)")
        if S.PLACE[seq[P][0]][0] == 'l':
            for t in range(2):
                b.raw(f"ds_write_b128 v{S.WBASE}, v[{40+8*t}:{43+8*t}] offset:{slot + t*2048}\nds_write_b128 v{S.WBASE}, v[{44+8*t}:{47+8*t}] offset:{slot + t*2048 + 1024}")
        if P + NP < N: dma(P + NP)
    b.raw("s_waitcnt vmcnt(0)")
    single_fin(1)
    b.raw(f"s_waitcnt lgkmcnt(0)\ns_mov_b32 m0, {S.LDS_DUMP}")

def gen_main(dbg=False, opts={}):
    b = Block()
    b.raw("s_cmp_ge_u32 s2, 256\ns_cbranch_scc1 L_main_exit")
    load_ptrs(b)
    b.raw(f"s_load_dwordx2 s[{P_DBG}:{P_DBG+1}], s[0:1], 104\ns_waitcnt lgkmcnt(0)")
    ts(b, 48, cond=(G_W, 0), mode='max')
    gen_roles(b)
    gen_worker(b)
    gen_chain_prologue(b)
    C.gen_step(b, False, tag='f', exit_label='L_chain_end', **opts)
    C.gen_step(b, True, tag='s', exit_label='L_chain_end', **opts)
    b.raw(f"""L_chain_end:
      s_waitcnt vmcnt(0)
      s_barrier
      s_mov_b32 s{C.S_T0}, {WS_FLAGS + 4*(F_SEG + 63)}
      s_cmp_eq_u32 s{C.S_W}, 3
      s_cselect_b32 s{C.S_T0}, s{C.S_T0}, {C.OOB}
      buffer_atomic_add v{C.RDL}, v{C.PUBI}, {C.SRD}, s{C.S_T0} offen sc1
      s_waitcnt vmcnt(0)""")
    ts(b, 51, cond=(C.S_W, 0), vt=(20, 21), mode='max')
    b.raw("s_branch L_main_exit\nL_worker_end:")
    ts(b, 53, cond=(G_W, 0), mode='max')
    b.raw("L_main_exit:\ns_endpgm")
    return b.finish()

if __name__ == '__main__':
    if '--ts' in sys.argv: TS = True
    NAME = 'gated_mix__memory_aug_recurrent_mem_tr__swiglu_ffn__prompt'
    hdr = open('cdna_kernels/' + NAME + '.s.ref').read().split('; Override launch geometry')[0]
    KN = NAME + '_kernel'
    o = hdr + """; @launch grid=(256,1,1) block=(256,1,1) lds=163840
.amdgcn_target "amdgcn-amd-amdhsa--gfx950"
.text
"""
    o += kernel_text(KN, gen_main(opts=dict(gdelay=1, nv1=3, kvcheck=1, trail=1)))
    o += '.section .rodata,"a"\n' + desc(KN, 512, 256)
    out = sys.argv[1] if len(sys.argv) > 1 and sys.argv[1].endswith('.s') else 'cdna_kernels/' + NAME + '.s'
    open(out, 'w').write(o)
```
